```python
import torch

def _softmax(x, axis=-1):
    return torch.softmax(x, dim=axis)
def _gelu(x):
    return torch.nn.functional.gelu(x, approximate="tanh")
def _silu(x):
    return torch.nn.functional.silu(x)
def _sigmoid(x):
    return torch.sigmoid(x)
def _layernorm(x, axis=-1, eps=1e-5):
    m = x.mean(dim=axis, keepdim=True)
    v = x.var(dim=axis, keepdim=True, unbiased=False)
    return (x - m) / torch.sqrt(v + eps)
def _scatter_add(tgt, idx, src, axis=0):
    return tgt.clone().index_add_(axis, idx, src)
def _segment_sum(src, seg, n):
    out = torch.zeros((n,) + src.shape[1:], dtype=src.dtype)
    return out.index_add_(0, seg, src)
def _pad(x, pw):
    flat = tuple(v for pair in reversed(pw) for v in pair)
    return torch.nn.functional.pad(x, flat)

kernel_name = 'parallel_sum__mha_block_cached__swiglu_ffn__decode'

def setup_inputs():

    _w = (lambda a: (lambda t: t.to(torch.bfloat16) if t.is_floating_point() else t)(torch.as_tensor(a)))
    def _A_setup():
        B, Sq, D = 4, 1, 640
        H, Sk, Dh = 32, 4096, 128
        return {
            "x": _w((lambda *s: torch.randn(*s, dtype=torch.bfloat16) * 0.05)(B, Sq, D)),
            "k_cache": _w((lambda *s: torch.randn(*s, dtype=torch.bfloat16) * 3.2)(B, H, Sk, Dh)),
            "v_cache": _w((lambda *s: torch.randn(*s, dtype=torch.bfloat16) * 1.6)(B, H, Sk, Dh)),
            "wq": _w((lambda *s: torch.randn(*s, dtype=torch.bfloat16) * 3.2)(D, H * Dh) * (D ** -0.5)),
            "wo": _w((lambda *s: torch.randn(*s, dtype=torch.bfloat16) * 1.6)(H * Dh, D) * ((H * Dh) ** -0.5)),
        }
    _A_in = _A_setup()

    def _B_setup():
        B, S, D, F = 4, 1, 640, 1728
        return {
            "x": _w((lambda *s: torch.randn(*s, dtype=torch.bfloat16) * 0.05)(B, S, D)),
            "w_gate": _w((lambda *s: torch.randn(*s, dtype=torch.bfloat16) * 0.05)(D, F)),
            "w_up": _w((lambda *s: torch.randn(*s, dtype=torch.bfloat16) * 0.05)(D, F)),
            "w_down": _w((lambda *s: torch.randn(*s, dtype=torch.bfloat16) * 0.05)(F, D)),
        }
    _B_in = _B_setup()

    return {
        "A_x": _A_in["x"],
        "A_k_cache": _A_in["k_cache"],
        "A_v_cache": _A_in["v_cache"],
        "A_wq": _A_in["wq"],
        "A_wo": _A_in["wo"],
        "B_x": _B_in["x"],
        "B_w_gate": _B_in["w_gate"],
        "B_w_up": _B_in["w_up"],
        "B_w_down": _B_in["w_down"],
    }

def reference(A_x, A_k_cache, A_v_cache, A_wq, A_wo, B_x, B_w_gate, B_w_up, B_w_down):
    def _A_ref(x, k_cache, v_cache, wq, wo):
        B, Sq, D = x.shape
        H, Dh = 32, 128
        q = (lambda x, *d: x.permute(*d))((x @ wq).reshape(B, Sq, H, Dh), 0, 2, 1, 3)
        scores = torch.einsum("bhqd,bhkd->bhqk", q, k_cache) * (Dh ** -0.5)
        p = _softmax(scores, axis=-1)
        o = torch.einsum("bhqk,bhkd->bhqd", p, v_cache)
        return (lambda x, *d: x.permute(*d))(o, 0, 2, 1, 3).reshape(B, Sq, H * Dh) @ wo

    def _B_ref(x, w_gate, w_up, w_down):
        g = _silu(x @ w_gate)
        u = x @ w_up
        return (g * u) @ w_down

    x = A_x
    xn = _layernorm(x, axis=-1)
    return x + _A_ref(xn, A_k_cache, A_v_cache, A_wq, A_wo) + _B_ref(xn, B_w_gate, B_w_up, B_w_down)
```

```python
import re

REG_RE = re.compile(r"\b([vs])\[(\d+):(\d+)\]|\b([vs])(\d+)\b|\b(vcc|exec)\b")
TRANS = ("v_exp_f32", "v_log_f32", "v_rcp_f32", "v_rsq_f32", "v_sqrt_f32", "v_sin_f32", "v_cos_f32")


def regs_of(tok):
    out = []
    for m in REG_RE.finditer(tok):
        if m.group(1):
            out += [(m.group(1), i) for i in range(int(m.group(2)), int(m.group(3)) + 1)]
        elif m.group(4):
            out.append((m.group(4), int(m.group(5))))
        else:
            out.append(("s", m.group(6)))
    return out


def split_ops(s):
    ops, depth, cur = [], 0, ""
    for ch in s:
        if ch == "[":
            depth += 1
        elif ch == "]":
            depth -= 1
        if ch == "," and depth == 0:
            ops.append(cur.strip())
            cur = ""
        else:
            cur += ch
    if cur.strip():
        ops.append(cur.strip())
    return ops


class Ins:
    __slots__ = ("mn", "kind", "dst", "src", "dpp", "src0", "srcc", "srcab", "wide_data", "slots", "text")


def parse(text):
    t = text.split(";")[0].strip()
    parts = t.split(None, 1)
    mn = parts[0]
    ops = split_ops(parts[1]) if len(parts) > 1 else []
    mods = ""
    if ops:
        lp = ops[-1].split(None, 1)
        ops[-1] = lp[0]
        if len(lp) > 1:
            mods = lp[1]
    i = Ins()
    i.mn, i.text, i.slots = mn, text, 1
    i.dst, i.src, i.dpp, i.src0, i.srcc, i.srcab, i.wide_data = [], [], False, [], [], [], []
    R = [regs_of(o) for o in ops]
    allr = [r for x in R for r in x]
    if mn == "s_nop":
        i.kind = "nop"
        i.slots = int(ops[0], 0) + 1
    elif mn.startswith("v_mfma"):
        i.kind = "mfma"
        i.dst = R[0]
        i.srcab = R[1] + R[2]
        i.srcc = R[3]
        i.src = i.srcab + i.srcc
    elif mn.startswith("v_"):
        i.kind = "valu"
        if mn in TRANS:
            i.kind = "trans"
        if mn.startswith("v_dot2"):
            i.kind = "dot"
        i.dst = R[0]
        i.src = [r for x in R[1:] for r in x]
        if mn.startswith("v_dot2c") or mn.startswith("v_fmac"):
            i.src += R[0]
            i.srcc = R[0]
            i.srcab = R[1] + R[2]
        elif mn.startswith("v_dot2"):
            i.srcc = R[3]
            i.srcab = R[1] + R[2]
        if mn.startswith("v_permlane"):
            i.dst = R[0] + R[1]
            i.src = R[0] + R[1]
        if "_dpp" in mn:
            i.dpp = True
            i.src0 = R[1]
    elif mn.startswith("buffer_") or mn.startswith("global_"):
        i.kind = "vmem"
        if "_load" in mn:
            i.dst = R[0]
            i.src = [r for x in R[1:] for r in x]
        else:
            i.src = allr
            if "atomic" in mn and "sc0" in mods.split():
                i.dst = R[0]
            if mn.endswith("x4") or mn.endswith("x3"):
                i.wide_data = R[0] if mn.startswith("buffer_") else R[1]
    elif mn.startswith("ds_"):
        i.kind = "ds"
        if mn.startswith("ds_read") or "permute" in mn or "swizzle" in mn or "_rtn" in mn:
            i.dst = R[0]
            i.src = [r for x in R[1:] for r in x]
        else:
            i.src = allr
    elif mn.startswith("s_"):
        i.kind = "salu"
        if mn.startswith(("s_cmp", "s_cbranch", "s_branch", "s_waitcnt", "s_barrier", "s_endpgm", "s_sleep", "s_setprio", "s_bitcmp")):
            i.src = allr
        else:
            i.dst = R[0] if R else []
            i.src = [r for x in R[1:] for r in x]
    else:
        raise ValueError("unknown instr " + text)
    return i


def isvalu(k):
    return k in ("valu", "trans", "dot")


def need(p, c):
    n = 0
    pd, cs, cd = set(p.dst), set(c.src), set(c.dst)
    pv = {r for r in pd if r[0] == "v"}
    ps = {r for r in pd if r[0] == "s"}
    if isvalu(p.kind):
        if c.dpp and pv & set(c.src0):
            n = max(n, 2)
        if c.mn.startswith("v_permlane") and pv & cs:
            n = max(n, 2)
        if c.mn.startswith(("v_readlane", "v_readfirstlane")) and pv & cs:
            n = max(n, 1)
        if ps:
            if isvalu(c.kind) and (ps & cs or (("s", "vcc") in ps and c.mn.startswith(("v_cndmask", "v_addc", "v_subb", "v_div_fmas")))):
                n = max(n, 4 if c.mn.startswith(("v_readlane", "v_writelane", "v_div_fmas")) else 2)
            if c.kind == "vmem" and ps & cs:
                n = max(n, 5)
            if ("s", "exec") in ps:
                n = max(n, 5)
            if c.kind == "salu" and ps & cs:
                n = max(n, 1)
        if c.kind == "mfma" and pv & cs:
            n = max(n, 3 if p.kind == "dot" else 2)
        if p.kind == "trans" and pv & cs and c.kind != "trans":
            n = max(n, 1)
        if p.kind == "trans" and pv & cs and c.kind == "trans":
            n = max(n, 1)
        if p.kind == "dot":
            if c.kind == "dot" and c.mn == p.mn:
                if pv & set(c.srcab):
                    n = max(n, 3)
            elif pv & (cs | cd):
                n = max(n, 3)
    if p.kind == "mfma":
        if c.kind == "mfma":
            if pv & set(c.srcab):
                n = max(n, 8)
            if pv & set(c.srcc) and list(c.srcc) != list(p.dst):
                n = max(n, 6)
            if pv & cd and list(c.dst) != list(p.dst):
                n = max(n, 8)
            if pv & cd and not (pv & set(c.srcc)):
                n = max(n, 8)
        elif pv & (cs | cd):
            n = max(n, 8)
        if isvalu(c.kind) and set(p.srcc) & cd:
            n = max(n, 3)
    if p.kind == "vmem" and p.wide_data and set(p.wide_data) & cd:
        n = max(n, 2)
    return n


class Emitter:
    def __init__(self):
        self.lines = []
        self.hist = []
        self.snap = {}
        self.vm = []
        self.nops = 0

    def raw(self, text):
        self.lines.append(text)

    def _age(self, k):
        self.hist = [(i, a + k) for (i, a) in self.hist if a + k < 24]

    def __call__(self, text, tag=None):
        for t in text.strip().split("\n"):
            t = t.strip()
            if not t or t.startswith(";"):
                continue
            self._one(t, tag)

    def _one(self, text, tag):
        ins = parse(text)
        n = 0
        for p, age in self.hist:
            n = max(n, need(p, ins) - age)
        while n > 0:
            k = min(n, 16)
            self.lines.append(f"    s_nop {k-1}")
            self.nops += 1
            self._age(k)
            n -= k
        self.lines.append("    " + text)
        self._age(ins.slots)
        self.hist.append((ins, 0))
        if ins.kind == "vmem":
            self.vm.append(tag if tag is not None else object())
            assert len(self.vm) <= 63, "too many outstanding vmem ops"
        if ins.mn.startswith(("s_cbranch", "s_branch")):
            lab = text.split()[1]
            self.snap.setdefault(lab, []).append(list(self.hist))
        if ins.mn == "s_waitcnt":
            m = re.search(r"vmcnt\((\d+)\)", text)
            if m:
                k = int(m.group(1))
                self.vm = self.vm[len(self.vm) - k:] if k < len(self.vm) else self.vm
                if k == 0:
                    self.vm = []

    def label(self, name):
        self.lines.append(name + ":")
        for h in self.snap.pop(name, []):
            for (i, a) in h:
                self.hist.append((i, a))

    def wait(self, tag, extra=""):
        idx = None
        for k, t in enumerate(self.vm):
            if t == tag:
                idx = k
        if idx is None:
            if extra:
                self("s_waitcnt " + extra)
            return
        n = len(self.vm) - 1 - idx
        self(f"s_waitcnt vmcnt({n}) {extra}".strip())

    def wait_nostate(self, tag):
        save = list(self.vm)
        self.wait(tag)
        self.vm = save

    def pending(self, tag):
        return tag in self.vm

    def text(self):
        return "\n".join(self.lines) + "\n"
```

```python
import struct, sys, argparse
from emit import Emitter

KN = "parallel_sum__mha_block_cached__swiglu_ffn__decode_kernel"
HEADER = open("parallel_sum__mha_block_cached__swiglu_ffn__decode.s.ref").read().split("; Override launch")[0]


def f32(x):
    return "0x%08x" % struct.unpack("<I", struct.pack("<f", x))[0]


def bitrev4(t):
    return int(f"{t:04b}"[::-1], 2)


XS = 0
QP = 10240
QF = QP + 8192
FP = QF + 256
ST = FP + 20480
OM = ST + 128
ZZ = OM + 16
HS = ZZ
OHL = ZZ + 512
OP = ZZ + 3072
YP = OP + 16 * 528
LDS_BYTES = YP + 16384
assert all(x % 16 == 0 for x in (QP, QF, FP, ST, OM, ZZ, OP, YP))

WS_ACC = 216 * 1024
WS_MBOX = 262144
WS_CNT = WS_MBOX + 256 * 128
WS_DBG = 1 << 20

SVC = 2

sK, sV, sWQ, sWO, sX, sF, sWD, sOUT, sDBG, sWS, sWSs = 40, 44, 48, 52, 56, 60, 64, 68, 72, 76, 80


def srd(n):
    return f"s[{n}:{n+3}]"


def vr(a, n=4):
    return f"v[{a}:{a+n-1}]"


def gen(W=8, wflags="nt", dbg=0, stamps=0, P=None):
    P = dict(P or {})
    e = Emitter()
    E = e
    vKV = 1
    M = 2
    vA, vB = 6, 7
    Q = 8
    DO = 12
    DY = 16
    BB = 20
    T = 28
    FA = 44
    RING = 52
    WO = 84
    assert RING + 4 * W <= WO
    vLane = 0

    def stamp(i):
        if not stamps:
            return
        E("s_memrealtime s[96:97]")
        E("s_waitcnt lgkmcnt(0)")
        E("v_mov_b32 v43, s96")
        E(f"s_mov_b32 s99, {WS_DBG + i*4}")
        E("v_mov_b32 v42, s98")
        E(f"buffer_store_dword v43, v42, {srd(sWSs)}, s99 offen")

    def reduce64(v, op, sdst):
        for r in (8, 4, 2, 1):
            E(f"v_{op}_f32_dpp v{v}, v{v}, v{v} row_ror:{r} row_mask:0xf bank_mask:0xf")
        E(f"v_{op}_f32_dpp v{v}, v{v}, v{v} row_bcast:15 row_mask:0xa bank_mask:0xf")
        E(f"v_{op}_f32_dpp v{v}, v{v}, v{v} row_bcast:31 row_mask:0xc bank_mask:0xf")
        E(f"v_readlane_b32 s{sdst}, v{v}, 63")

    def set_exec(lo, hi):
        if lo == hi == 0xffffffff:
            E("s_mov_b64 exec, -1")
        else:
            E(f"s_mov_b32 exec_lo, 0x{lo:08x}")
            E(f"s_mov_b32 exec_hi, 0x{hi:08x}")

    def mk_srd(n, ptr, nbytes):
        E(f"s_mov_b32 s{n}, s{ptr}")
        E(f"s_mov_b32 s{n+1}, s{ptr+1}")
        if nbytes is not None:
            E(f"s_mov_b32 s{n+2}, 0x{nbytes:x}")
        E(f"s_mov_b32 s{n+3}, 0x20000")

    E("s_cmp_ge_u32 s2, 256")
    E("s_cbranch_scc1 L_end")
    E("s_load_dwordx16 s[16:31], s[0:1], 0")
    E("s_load_dwordx8 s[32:39], s[0:1], 64")
    E("v_lshrrev_b32 v1, 6, v0")
    E(f"v_and_b32 v{T}, 63, v0")
    E("v_readfirstlane_b32 s3, v1")
    E("s_and_b32 s4, s2, 31")
    E("s_lshr_b32 s5, s2, 6")
    E("s_bfe_u32 s6, s2, 0x10005")
    E("s_lshl_b32 s7, s4, 1")
    E("s_add_u32 s7, s7, s6")
    E(f"v_and_b32 v{T+1}, 15, v0")
    E(f"v_bfe_u32 v{T+2}, v0, 4, 2")
    E("s_and_b32 s9, s3, 3")
    E("s_mul_i32 s9, s9, 1280")
    E(f"v_lshl_add_u32 v{vA}, v{T}, 4, s9")
    E(f"v_lshl_add_u32 v{vB}, v{T}, 2, s9")
    E("s_mul_i32 s10, s3, %d" % (40 * 8192))
    E("s_lshl_b32 s11, s4, 8")
    E("s_add_u32 s10, s10, s11")
    E(f"v_mul_u32_u24 v{T+3}, {10*8192}, v{T+2}")
    E(f"v_lshl_add_u32 v{T+3}, v{T+1}, 4, v{T+3}")
    E(f"v_add_u32 v{T+3}, s10, v{T+3}")
    E("s_lshl_b32 s10, s5, 6")
    E("s_add_u32 s10, s10, s7")
    E("s_lshl_b32 s10, s10, 19")
    E("s_lshl_b32 s11, s3, 12")
    E("s_add_u32 s10, s10, s11")
    E(f"v_lshl_add_u32 v{vKV}, v{T}, 4, s10")
    E("s_and_b32 s12, s2, 3")
    E("s_lshr_b32 s13, s2, 2")
    E("s_mul_i32 s12, s12, 160")
    E("s_lshl_b32 s11, s3, 4")
    E("s_add_u32 s12, s12, s11")
    E("s_sub_u32 s12, s12, 96")
    E("s_cmp_ge_u32 s13, 27")
    E("s_cselect_b32 s14, 27, 0")
    E("s_sub_u32 s14, s13, s14")
    E("s_lshl_b32 s14, s14, 7")
    E("s_mul_i32 s15, s12, 3456")
    E("s_add_u32 s14, s14, s15")
    E(f"v_lshrrev_b32 v{T+4}, 3, v{T}")
    E(f"v_mul_u32_u24 v{T+4}, 3456, v{T+4}")
    E(f"v_and_b32 v{T+5}, 7, v0")
    E(f"v_lshl_add_u32 v{T+4}, v{T+5}, 4, v{T+4}")
    E(f"v_add_u32 v{T+4}, s14, v{T+4}")
    if stamps:
        E("s_lshl_b32 s98, s2, 8")
    E("s_cmp_ge_u32 s3, 6")
    E(f"s_cselect_b32 s{sF+2}, {640*3456}, 0")
    E("s_cmp_lt_u32 s2, 216")
    E(f"s_cselect_b32 s{sF+2}, s{sF+2}, 0")
    E(f"s_mov_b32 s{sF+3}, 0x20000")
    E(f"s_cmp_eq_u32 s3, {SVC}")
    E(f"s_cselect_b32 s{sWSs+2}, 0x20000000, 0")
    E(f"s_cselect_b32 s{sDBG+2}, 256, 0")
    E(f"s_mov_b32 s{sWSs+3}, 0x20000")
    E(f"s_mov_b32 s{sDBG+3}, 0x20000")
    E(f"s_mov_b32 s{sX+2}, 5120")
    E(f"s_mov_b32 s{sX+3}, 0x20000")
    E(f"s_mov_b32 s{sWQ+2}, {640*8192}")
    E(f"s_mov_b32 s{sWQ+3}, 0x20000")
    E(f"s_mov_b32 s{sK+2}, 0x8000000")
    E(f"s_mov_b32 s{sK+3}, 0x20000")
    E("s_waitcnt lgkmcnt(0)")
    E(f"s_mov_b64 s[{sX}:{sX+1}], s[16:17]")
    E(f"buffer_load_dwordx4 {vr(BB)}, v{vA}, {srd(sX)}, 0 offen", tag="x")
    E(f"buffer_load_dword v{BB+4}, v{vB}, {srd(sX)}, 0 offen offset:1024", tag="x")
    E(f"s_mov_b64 s[{sWQ}:{sWQ+1}], s[22:23]")
    for t in range(10):
        if t:
            E(f"s_mov_b32 s8, {t*8192}")
        E(f"buffer_load_dwordx4 {vr(WO+4*t)}, v{T+3}, {srd(sWQ)}, {'s8' if t else '0'} offen {wflags}", tag=f"wq{t}")
    E("s_cmp_ge_u32 s13, 27")
    E(f"s_cselect_b64 s[{sF}:{sF+1}], s[30:31], s[28:29]")
    E(f"s_mov_b32 s8, {8*3456}")
    E(f"buffer_load_dwordx4 {vr(FA)}, v{T+4}, {srd(sF)}, 0 offen nt", tag="f0")
    E(f"buffer_load_dwordx4 {vr(FA+4)}, v{T+4}, {srd(sF)}, s8 offen nt", tag="f1")
    E(f"s_mov_b64 s[{sK}:{sK+1}], s[18:19]")

    def issue(n):
        if n >= 64:
            return
        t = n & 31
        so = (t >> 2) * 65536
        r = RING + 4 * (n % W)
        if so:
            E(f"s_mov_b32 s8, {so}")
        E(f"buffer_load_dwordx4 {vr(r)}, v{vKV}, {srd(sK if n < 32 else sV)}, {'s8' if so else '0'} offen offset:{(t&3)*1024} nt", tag=f"kv{n}")

    for n in range(W):
        issue(n)
    mk_srd(sV, 20, 0x8000000)
    E(f"s_mov_b64 s[{sWSs}:{sWSs+1}], s[38:39]")
    E(f"s_mov_b64 s[{sDBG}:{sDBG+1}], s[36:37]")
    mk_srd(sWS, 38, 0x20000000)
    mk_srd(sOUT, 34, 5120)
    E("s_mul_i32 s84, s3, 13")
    E("s_lshr_b32 s84, s84, 6")
    E("s_mul_i32 s85, s84, 5")
    E("s_sub_u32 s85, s3, s85")
    E("s_cmp_lt_u32 s3, 15")
    E(f"s_cselect_b32 s{sWO+2}, {4096*1280}, 0")
    E(f"s_cselect_b32 s{sWD+2}, {1728*1280}, 0")
    mk_srd(sWO, 24, None)
    mk_srd(sWD, 32, None)
    stamp(0)
    E(f"v_and_b32 v{T+6}, 1, v0")
    E(f"v_cmp_eq_u32 vcc, 1, v{T+6}")
    E(f"v_mov_b32 v{T+7}, 0xffff")
    E(f"v_mov_b32 v{T+8}, 0xffff0000")
    E(f"v_cndmask_b32 v{T+6}, v{T+7}, v{T+8}, vcc")
    E(f"v_lshrrev_b32 v{T+7}, 1, v{T+5}")
    for r in range(4):
        E(f"v_cmp_eq_u32 vcc, {r}, v{T+7}")
        E(f"v_cndmask_b32 v{M+r}, 0, v{T+6}, vcc")
    E("s_mul_i32 s9, s5, 2560")
    E("s_mul_i32 s10, s3, 160")
    E("s_add_u32 s9, s9, s10")
    E(f"v_mul_u32_u24 v{vA}, 40, v{T+2}")
    E(f"v_add_u32 v{vA}, s9, v{vA}")
    E("s_lshl_b32 s9, s12, 2")
    E(f"v_lshrrev_b32 v{vB}, 3, v{T}")
    E(f"v_lshl_add_u32 v{vB}, v{vB}, 2, s9")

    E("s_cmp_lt_u32 s3, 4")
    E("s_cbranch_scc0 L_noln")
    X = T
    t0, t1, t2, t3 = T + 10, T + 11, T + 12, T + 13
    E(f"v_lshlrev_b32 v{t3}, 5, v{T}")
    E("s_mul_i32 s9, s3, 2560")
    E(f"v_add_u32 v{t3}, s9, v{t3}")
    E(f"v_lshlrev_b32 v{T+14}, 3, v{T}")
    E(f"v_add_u32 v{T+14}, s9, v{T+14}")
    E(f"s_mov_b32 s10, {f32(640.0)}")
    E(f"s_mov_b32 s11, {f32(1.0/640.0)}")
    e.wait_nostate("x")
    for i in range(5):
        E(f"v_lshlrev_b32 v{X+2*i}, 16, v{BB+i}")
        E(f"v_and_b32 v{X+2*i+1}, 0xffff0000, v{BB+i}")
    E(f"v_add_f32 v{t0}, v{X}, v{X+1}")
    E(f"v_add_f32 v{t1}, v{X+2}, v{X+3}")
    for i in range(4, 10, 2):
        E(f"v_add_f32 v{t0}, v{t0}, v{X+i}")
        E(f"v_add_f32 v{t1}, v{t1}, v{X+i+1}")
    E(f"v_add_f32 v{t0}, v{t0}, v{t1}")
    reduce64(t0, "add", 9)

    def div640(dst, tmp):
        E(f"v_mov_b32 v{tmp}, s9")
        E(f"v_mul_f32 v{dst}, s11, v{tmp}")
        E(f"v_fma_f32 v{tmp}, -v{dst}, s10, v{tmp}")
        E(f"v_fma_f32 v{dst}, v{tmp}, s11, v{dst}")

    div640(t2, t1)
    E(f"v_sub_f32 v{BB}, v{X}, v{t2}")
    E(f"v_sub_f32 v{BB+1}, v{X+1}, v{t2}")
    E(f"v_mul_f32 v{t0}, v{BB}, v{BB}")
    E(f"v_mul_f32 v{t1}, v{BB+1}, v{BB+1}")
    for i in range(2, 10, 2):
        E(f"v_sub_f32 v{BB}, v{X+i}, v{t2}")
        E(f"v_sub_f32 v{BB+1}, v{X+i+1}, v{t2}")
        E(f"v_fmac_f32 v{t0}, v{BB}, v{BB}")
        E(f"v_fmac_f32 v{t1}, v{BB+1}, v{BB+1}")
    E(f"v_add_f32 v{t0}, v{t0}, v{t1}")
    reduce64(t0, "add", 9)
    div640(t0, t1)
    E(f"v_cvt_pk_bf16_f32 v{t1}, v{t2}, v{t0}")
    E(f"v_lshlrev_b32 v{t2}, 16, v{t1}")
    E(f"v_and_b32 v{t0}, 0xffff0000, v{t1}")
    E(f"v_add_f32 v{t0}, {f32(1e-5)}, v{t0}")
    E(f"v_cvt_pk_bf16_f32 v{t0}, v{t0}, v{t0}")
    E(f"v_and_b32 v{t0}, 0xffff0000, v{t0}")
    E(f"v_sqrt_f32 v{t0}, v{t0}")
    E(f"v_cvt_pk_bf16_f32 v{t0}, v{t0}, v{t0}")
    E(f"v_and_b32 v{t0}, 0xffff0000, v{t0}")
    E(f"v_rcp_f32 v{t0}, v{t0}")
    for i in range(0, 10, 2):
        E(f"v_sub_f32 v{X+i}, v{X+i}, v{t2}")
        E(f"v_sub_f32 v{X+i+1}, v{X+i+1}, v{t2}")
        E(f"v_cvt_pk_bf16_f32 v{t1}, v{X+i}, v{X+i+1}")
        E(f"v_lshlrev_b32 v{X+i}, 16, v{t1}")
        E(f"v_and_b32 v{X+i+1}, 0xffff0000, v{t1}")
        E(f"v_mul_f32 v{X+i}, v{X+i}, v{t0}")
        E(f"v_mul_f32 v{X+i+1}, v{X+i+1}, v{t0}")
        E(f"v_cvt_pk_bf16_f32 v{X+i}, v{X+i}, v{X+i}")
        E(f"v_cvt_pk_bf16_f32 v{X+i+1}, v{X+i+1}, v{X+i+1}")
    E(f"ds_write_b128 v{t3}, {vr(X)} offset:{XS}")
    E(f"ds_write_b128 v{t3}, {vr(X+4)} offset:{XS+16}")
    E(f"ds_write_b64 v{T+14}, {vr(X+8,2)} offset:{XS+2048}")
    E("s_branch L_lnjoin")
    e.label("L_noln")
    E(f"v_lshlrev_b32 v{T+10}, 2, v0")
    E(f"v_mov_b32 v{T+11}, 0")
    E(f"ds_write_b32 v{T+10}, v{T+11} offset:{ZZ-1024}")
    e.label("L_lnjoin")
    E("s_waitcnt lgkmcnt(0)")
    E("s_barrier")
    stamp(1)

    for i in range(5):
        E(f"ds_read_b64 {vr(T+2*i,2)}, v{vA} offset:{XS+8*i}")
    E(f"v_and_b32 v{T+10}, 7, v0")
    E(f"v_bfe_u32 v{T+11}, v0, 4, 2")
    E(f"v_lshl_add_u32 v{T+10}, v{T+11}, 3, v{T+10}")
    E(f"s_lshl_b32 s9, s3, 9")
    E(f"v_lshl_add_u32 v{T+12}, v{T+10}, 4, s9")
    e.wait("x", "lgkmcnt(0)")

    def mkB(setidx, src, dpp=None):
        for r in range(4):
            if dpp is None:
                E(f"v_and_b32 v{BB+4*setidx+r}, v{src}, v{M+r}")
            else:
                E(f"v_and_b32_dpp v{BB+4*setidx+r}, v{src}, v{M+r} row_newbcast:{dpp} row_mask:0xf bank_mask:0xf")

    mkB(0, T)
    for t in range(10):
        if t + 1 < 10:
            mkB((t + 1) & 1, T + t + 1)
        e.wait(f"wq{t}")
        E(f"v_mfma_f32_16x16x32_bf16 {vr(DO)}, {vr(WO+4*t)}, {vr(BB+4*(t&1))}, {vr(DO) if t else '0'}")
    E("s_cmp_ge_u32 s3, 6")
    E("s_cbranch_scc0 L_nof1a")
    for b in range(4):
        for u in range(2):
            E(f"ds_read_b32 v{T+2*b+u}, v{vB} offset:{XS+b*2560+u*32}")
    e.label("L_nof1a")
    set_exec(0x00ff00ff, 0x00ff00ff)
    E(f"ds_write_b128 v{T+12}, {vr(DO)} offset:{QP}")
    set_exec(0xffffffff, 0xffffffff)
    E("s_cmp_ge_u32 s3, 6")
    E("s_cbranch_scc0 L_nof1")
    E(f"v_and_b32 v{T+12}, 15, v{T+10}")
    E(f"v_lshlrev_b32 v{T+12}, 4, v{T+12}")
    E(f"v_lshrrev_b32 v{T+11}, 1, v{T+11}")
    E(f"v_lshl_add_u32 v{T+12}, v{T+11}, 10, v{T+12}")
    E("s_lshl_b32 s9, s3, 11")
    E(f"v_add_u32 v{T+12}, s9, v{T+12}")
    E("s_waitcnt lgkmcnt(0)")
    seq = [(u, b) for u in range(2) for b in range(4)]
    mkB(0, T + 0)
    for i, (u, b) in enumerate(seq):
        if i + 1 < len(seq):
            mkB((i + 1) & 1, T + 2 * seq[i + 1][1] + seq[i + 1][0])
        if b == 0:
            e.wait_nostate(f"f{u}")
        d = WO + 4 * b
        E(f"v_mfma_f32_16x16x32_bf16 {vr(d)}, {vr(FA+4*u)}, {vr(BB+4*(i&1))}, {vr(d) if u else '0'}")
    set_exec(0x00ff00ff, 0xff00ff00)
    for b in range(4):
        E(f"ds_write_b128 v{T+12}, {vr(WO+4*b)} offset:{FP-6*2048+b*256}")
    set_exec(0xffffffff, 0xffffffff)
    e.label("L_nof1")
    E("s_waitcnt lgkmcnt(0)")
    E("s_barrier")
    E("s_cmp_lt_u32 s3, 2")
    E("s_cbranch_scc0 L_noqr")
    E(f"v_lshlrev_b32 v{T}, 2, v0")
    for wv in range(16):
        E(f"ds_read_b32 v{WO+wv}, v{T} offset:{QP+wv*512}")
    E(f"v_and_b32 v{T+1}, 0x60, v0")
    E(f"v_and_b32 v{T+2}, 3, v0")
    E(f"v_lshl_add_u32 v{T+1}, v{T+2}, 3, v{T+1}")
    E(f"v_bfe_u32 v{T+2}, v0, 2, 3")
    E(f"v_add_lshl_u32 v{T+1}, v{T+1}, v{T+2}, 1")
    E("s_waitcnt lgkmcnt(0)")
    n = 16
    while n > 1:
        n //= 2
        for i in range(n):
            E(f"v_add_f32 v{WO+i}, v{WO+i}, v{WO+i+n}")
    E(f"v_cvt_pk_bf16_f32 v{WO}, v{WO}, v{WO}")
    E(f"ds_write_b16 v{T+1}, v{WO} offset:{QF}")
    E("s_waitcnt lgkmcnt(0)")
    e.label("L_noqr")
    E("s_barrier")
    E(f"v_and_b32 v{T}, 15, v0")
    E(f"v_lshlrev_b32 v{T}, 4, v{T}")
    E(f"ds_read_b128 {vr(Q)}, v{T} offset:{QF}")
    stamp(2)
    E(f"v_and_b32 v{vA}, 63, v0")
    E(f"v_lshlrev_b32 v{vA}, 4, v{vA}")
    E(f"s_cmp_eq_u32 s3, {SVC}")
    E("s_cbranch_scc0 L_nofr")
    for r in range(4):
        E(f"v_mov_b32 v{T+r}, 0")
    E("s_cmp_lt_u32 s2, 216")
    E("s_cbranch_scc0 L_nofr")
    for hb in range(2):
        for k in range(10):
            E(f"ds_read_b128 {vr(WO+4*k)}, v{vA} offset:{FP+(hb*10+k)*1024}")
        for k in range(10):
            E(f"s_waitcnt lgkmcnt({9-k})")
            for r in range(4):
                E(f"v_add_f32 v{T+r}, v{T+r}, v{WO+4*k+r}")
    e.label("L_nofr")
    E("s_lshl_b32 s8, s2, 10")
    E(f"buffer_store_dwordx4 {vr(T)}, v{vA}, {srd(sWSs)}, s8 offen sc1", tag="S1")
    E("s_lshl_b32 s9, s2, 7")
    E(f"s_add_u32 s9, s9, {WS_MBOX}")
    E("s_lshl_b32 s10, s2, 12")
    E(f"s_add_u32 s10, s10, {WS_CNT}")
    E("s_cmp_lt_u32 s2, 4")
    E("s_cselect_b32 s10, s10, s9")
    E(f"v_mov_b32 v{T+4}, s9")
    E(f"v_writelane_b32 v{T+4}, s10, 1")
    E(f"v_mov_b32 v{T+6}, 0")
    E(f"v_mov_b32 v{T+7}, 0")
    set_exec(3, 0)
    E(f"buffer_store_dwordx2 {vr(T+6,2)}, v{T+4}, {srd(sWSs)}, 0 offen sc1", tag="S2")
    set_exec(0xffffffff, 0xffffffff)
    if dbg:
        E("s_waitcnt lgkmcnt(0)")
        E("s_lshl_b32 s8, s2, 12")
        E(f"s_add_u32 s8, s8, {WS_DBG}")
        E(f"buffer_store_dwordx4 {vr(Q)}, v{vA}, {srd(sWSs)}, s8 offen")

    vWOa, vWDa = vA, vB
    E(f"v_and_b32 v{T+8}, 15, v0")
    E(f"v_bfe_u32 v{T+9}, v0, 4, 2")
    E("s_lshl_b32 s9, s85, 8")
    E(f"v_lshl_add_u32 v{T+8}, v{T+8}, 4, s9")
    E("s_lshl_b32 s9, s4, 7")
    E("s_mul_i32 s10, s84, 44")
    E("s_add_u32 s9, s9, s10")
    E("s_mul_i32 s9, s9, 1280")
    E(f"v_mul_u32_u24 v{vWOa}, {11*1280}, v{T+9}")
    E(f"v_add3_u32 v{vWOa}, v{vWOa}, s9, v{T+8}")
    E("s_mul_i32 s9, s7, 27")
    E("s_mul_i32 s10, s84, 9")
    E("s_add_u32 s9, s9, s10")
    E("s_mul_i32 s9, s9, 1280")
    E(f"v_mul_u32_u24 v{vWDa}, {3*1280}, v{T+9}")
    E(f"v_add3_u32 v{vWDa}, v{vWDa}, s9, v{T+8}")
    E(f"v_cmp_eq_u32 vcc, 3, v{T+9}")
    E(f"v_mov_b32 v{T+8}, 0x7fff0000")
    E(f"v_cndmask_b32 v{vWDa}, v{vWDa}, v{T+8}, vcc")
    E("s_waitcnt lgkmcnt(0)")

    def issue_wo(t):
        so = (t // 4) * 5120
        if so:
            E(f"s_mov_b32 s8, {so}")
        E(f"buffer_load_dwordx4 {vr(WO+4*t)}, v{vWOa}, {srd(sWO)}, {'s8' if so else '0'} offen offset:{(t%4)*1280} {wflags}", tag=f"wo{t}")

    def issue_wd(k):
        E(f"buffer_load_dwordx4 {vr(WO+32+4*k)}, v{vWDa}, {srd(sWD)}, 0 offen offset:{k*1280} {wflags}", tag=f"wd{k}")

    n_extra0 = P.get("extra0", 2)
    n_S3 = P.get("S3", W)
    n_poll = P.get("poll", 18)
    n_chk = P.get("chk", n_poll + W)
    n_h = P.get("h", n_chk + W)
    n_B5 = P.get("B5", max(n_h + 1, 34))
    n_mb = P.get("mb", 48)
    n_mbc = P.get("mbc", n_mb + W)
    extras = [("wd", 0), ("wd", 1), ("wd", 2)] + [("wo", t) for t in range(8)]

    S0 = T + 8
    PV0 = T + 10
    POLL = T + 12
    HG = FA

    E("s_mov_b32 s86, 0xcccccccc")
    E("s_mov_b32 s87, 0xcccccccc")
    E("s_mov_b32 s88, 0xaaaaaaaa")
    E("s_mov_b32 s89, 0xaaaaaaaa")

    def k_consume(n):
        r = RING + 4 * (n % W)
        a = T + (n & 1)
        e.wait(f"kv{n}")
        E(f"v_dot2_f32_bf16 v{a}, v{r}, v{Q}, 0")
        for i in range(1, 4):
            E(f"v_dot2_f32_bf16 v{a}, v{r+i}, v{Q+i}, v{a}")
        issue(n + W)
        if n & 1:
            b = T + 2 + ((n >> 1) & 1)
            E(f"v_add_f32_dpp v{b}, v{T}, v{T} row_shl:8 row_mask:0xf bank_mask:0x3")
            E(f"v_add_f32_dpp v{b}, v{T+1}, v{T+1} row_shr:8 row_mask:0xf bank_mask:0xc")
        if (n & 3) == 3:
            d = T + 4 + ((n >> 2) & 1)
            E(f"v_add_f32_dpp v{d}, v{T+2}, v{T+2} row_shl:4 row_mask:0xf bank_mask:0x5")
            E(f"v_add_f32_dpp v{d}, v{T+3}, v{T+3} row_shr:4 row_mask:0xf bank_mask:0xa")
            E(f"v_add_f32_dpp v{d}, v{d}, v{d} quad_perm:[2,3,0,1] row_mask:0xf bank_mask:0xf")
        if (n & 7) == 7:
            ee = T + 6 + ((n >> 3) & 1)
            E(f"v_cndmask_b32 v{ee}, v{T+4}, v{T+5}, s[86:87]")
            E(f"v_add_f32_dpp v{ee}, v{ee}, v{ee} quad_perm:[1,0,3,2] row_mask:0xf bank_mask:0xf")
        if (n & 15) == 15:
            E(f"v_cndmask_b32 v{S0 + (n >> 4)}, v{T+6}, v{T+7}, s[88:89]")

    def side(n):
        if n_extra0 <= n < n_extra0 + len(extras):
            kind, i = extras[n - n_extra0]
            (issue_wd if kind == "wd" else issue_wo)(i)
        if n == n_S3:
            e.wait("S2")
            E(f"v_mov_b32 v{POLL}, 1")
            E(f"v_mov_b32 v{POLL+1}, 0")
            set_exec(1, 0)
            E(f"buffer_atomic_add v{POLL}, v{POLL+1}, {srd(sDBG)}, 0 offen", tag="S3")
            set_exec(0xffffffff, 0xffffffff)
        if n == n_poll:
            E(f"v_mov_b32 v{POLL+1}, 0")
            set_exec(1, 0)
            E(f"buffer_load_dword v{POLL}, v{POLL+1}, {srd(sDBG)}, 0 offen sc1", tag="S4")
            set_exec(0xffffffff, 0xffffffff)
        if n == n_chk:
            e.wait("S4")
            save = list(e.vm)
            E(f"s_cmp_eq_u32 s3, {SVC}")
            E("s_cbranch_scc0 L_polldone")
            E("s_mov_b32 s9, 0x100000")
            e.label("L_poll")
            E("s_nop 1")
            E(f"v_readfirstlane_b32 s10, v{POLL}")
            E("s_cmp_ge_u32 s10, 256")
            E("s_cbranch_scc1 L_polldone")
            E("s_sub_u32 s9, s9, 1")
            E("s_cmp_eq_u32 s9, 0")
            E("s_cbranch_scc1 L_polldone")
            E("s_sleep 4")
            set_exec(1, 0)
            E(f"buffer_load_dword v{POLL}, v{POLL+1}, {srd(sDBG)}, 0 offen sc1")
            set_exec(0xffffffff, 0xffffffff)
            E("s_waitcnt vmcnt(0)")
            E("s_branch L_poll")
            e.label("L_polldone")
            e.vm = save
            a0, a1 = POLL, POLL + 1
            E(f"v_and_b32 v{a0}, 63, v0")
            E("s_mul_i32 s9, s7, 27")
            E(f"v_add_u32 v{a0}, s9, v{a0}")
            E(f"v_lshrrev_b32 v{a1}, 6, v{a0}")
            E(f"v_lshlrev_b32 v{a1}, 12, v{a1}")
            E(f"v_bfe_u32 v{HG}, v{a0}, 5, 1")
            E(f"v_lshl_add_u32 v{a1}, v{HG}, 7, v{a1}")
            E(f"v_and_b32 v{HG}, 7, v{a0}")
            E(f"v_lshl_add_u32 v{a1}, v{HG}, 4, v{a1}")
            E(f"v_bfe_u32 v{HG}, v{a0}, 3, 2")
            E(f"v_lshl_add_u32 v{a1}, v{HG}, 2, v{a1}")
            E("s_lshl_b32 s8, s5, 8")
            E(f"s_add_u32 s9, s8, {27*4096}")
            set_exec(0x07ffffff, 0)
            for m in range(2):
                for s in range(4):
                    E(f"buffer_load_dword v{HG+4*m+s}, v{a1}, {srd(sWSs)}, s{8+m} offen offset:{s*1024} sc1", tag="S5")
            set_exec(0xffffffff, 0xffffffff)
        if n == n_h:
            e.wait("S5")
            E(f"s_cmp_eq_u32 s3, {SVC}")
            E("s_cbranch_scc0 L_noh")
            E(f"v_add_f32 v{HG}, v{HG}, v{HG+1}")
            E(f"v_add_f32 v{HG+2}, v{HG+2}, v{HG+3}")
            E(f"v_add_f32 v{HG+4}, v{HG+4}, v{HG+5}")
            E(f"v_add_f32 v{HG+6}, v{HG+6}, v{HG+7}")
            E(f"v_add_f32 v{HG}, v{HG}, v{HG+2}")
            E(f"v_add_f32 v{HG+4}, v{HG+4}, v{HG+6}")
            E(f"v_cvt_pk_bf16_f32 v{HG+1}, v{HG}, v{HG+4}")
            E(f"v_lshlrev_b32 v{HG}, 16, v{HG+1}")
            E(f"v_and_b32 v{HG+4}, 0xffff0000, v{HG+1}")
            E(f"v_mul_f32 v{HG+2}, {f32(-1.4426950408889634)}, v{HG}")
            E(f"v_exp_f32 v{HG+2}, v{HG+2}")
            E(f"v_add_f32 v{HG+2}, 1.0, v{HG+2}")
            E(f"v_rcp_f32 v{HG+2}, v{HG+2}")
            E(f"v_mul_f32 v{HG}, v{HG}, v{HG+2}")
            E(f"v_cvt_pk_bf16_f32 v{HG}, v{HG}, v{HG}")
            E(f"v_and_b32 v{HG}, 0xffff0000, v{HG}")
            E(f"v_mul_f32 v{HG}, v{HG}, v{HG+4}")
            E(f"v_cvt_pk_bf16_f32 v{HG}, v{HG}, v{HG}")
            E(f"v_and_b32 v{HG+1}, 63, v0")
            E(f"v_lshlrev_b32 v{HG+1}, 2, v{HG+1}")
            set_exec(0x07ffffff, 0)
            E(f"ds_write_b32 v{HG+1}, v{HG} offset:{HS}")
            set_exec(0xffffffff, 0xffffffff)
            E("s_waitcnt lgkmcnt(0)")
            e.label("L_noh")
        if n == n_B5:
            E("s_barrier")
            E(f"v_bfe_u32 v{HG}, v0, 4, 2")
            E(f"v_mul_u32_u24 v{HG}, 12, v{HG}")
            E(f"v_bfe_u32 v{HG+1}, v0, 3, 1")
            E(f"v_lshl_add_u32 v{HG}, v{HG+1}, 8, v{HG}")
            E("s_mul_i32 s9, s84, 36")
            E(f"v_add_u32 v{HG}, s9, v{HG}")
            for k in range(3):
                E(f"ds_read_b32 v{HG+1+k}, v{HG} offset:{HS+4*k}")
            e.wait("wd2", "lgkmcnt(0)")
            for k in range(3):
                mkB(k & 1, HG + 1 + k)
                E(f"v_mfma_f32_16x16x32_bf16 {vr(DY)}, {vr(WO+32+4*k)}, {vr(BB+4*(k&1))}, {vr(DY) if k else '0'}")
            for t in range(8, 11):
                issue_wo(t)
            tail_addrs()
        if n == n_mb:
            E("s_xor_b32 s9, s2, 32")
            E("s_lshl_b32 s9, s9, 7")
            E(f"s_add_u32 s90, s9, {WS_MBOX}")
            E(f"v_mov_b32 v{T}, 0")
            set_exec(1, 0)
            E(f"buffer_load_dwordx2 {vr(POLL,2)}, v{T}, {srd(sWSs)}, s90 offen sc1", tag="S7")
            set_exec(0xffffffff, 0xffffffff)
        if n == n_mbc:
            e.wait("S7")
            save = list(e.vm)
            E(f"s_cmp_eq_u32 s3, {SVC}")
            E("s_cbranch_scc0 L_nomb")
            E("s_mov_b32 s9, 0x100000")
            e.label("L_mb")
            E("s_nop 1")
            E(f"v_readfirstlane_b32 s10, v{POLL+1}")
            E("s_cmp_lg_u32 s10, 0")
            E("s_cbranch_scc1 L_mbdone")
            E("s_sub_u32 s9, s9, 1")
            E("s_cmp_eq_u32 s9, 0")
            E("s_cbranch_scc1 L_mbdone")
            E("s_sleep 4")
            set_exec(1, 0)
            E(f"buffer_load_dwordx2 {vr(POLL,2)}, v{T}, {srd(sWSs)}, s90 offen sc1")
            set_exec(0xffffffff, 0xffffffff)
            E("s_waitcnt vmcnt(0)")
            E("s_branch L_mb")
            e.label("L_mbdone")
            m, l, m2, l2 = T + 14, T + 15, POLL, POLL + 1
            E(f"v_max_f32 v{T+1}, v{m}, v{m2}")
            E(f"v_sub_f32 v{T+2}, v{m}, v{T+1}")
            E(f"v_sub_f32 v{T+3}, v{m2}, v{T+1}")
            E(f"v_mul_f32 v{T+2}, {f32(1.4426950408889634)}, v{T+2}")
            E(f"v_mul_f32 v{T+3}, {f32(1.4426950408889634)}, v{T+3}")
            E(f"v_exp_f32 v{T+2}, v{T+2}")
            E(f"v_exp_f32 v{T+3}, v{T+3}")
            E(f"v_mul_f32 v{T+1}, v{l}, v{T+2}")
            E(f"v_fmac_f32 v{T+1}, v{l2}, v{T+3}")
            E(f"v_rcp_f32 v{T+1}, v{T+1}")
            E(f"v_mul_f32 v{T+1}, v{T+1}, v{T+2}")
            set_exec(1, 0)
            E(f"ds_write_b32 v{T}, v{T+1} offset:{OM}")
            set_exec(0xffffffff, 0xffffffff)
            e.label("L_nomb")
            e.vm = save

    A_opw, A_opr, A_ohw, A_ohr, A_ypw, A_ypr, A_acc, A_z = FA, FA + 1, FA + 2, FA + 3, FA + 4, FA + 5, FA + 6, FA + 7

    def tail_addrs():
        j, g, x, y = T + 1, T + 2, T + 3, T + 4
        E(f"v_and_b32 v{j}, 15, v0")
        E(f"v_bfe_u32 v{g}, v0, 4, 2")
        E(f"v_and_b32 v{x}, 7, v0")
        E(f"v_lshl_add_u32 v{x}, v{g}, 3, v{x}")
        E("s_mul_i32 s9, s3, 528")
        E(f"v_lshl_add_u32 v{A_opw}, v{x}, 4, s9")
        E(f"v_mul_u32_u24 v{x}, 528, v{j}")
        E(f"v_lshl_add_u32 v{x}, v{g}, 3, v{x}")
        E("s_lshl_b32 s9, s3, 5")
        E(f"v_add_u32 v{A_opr}, s9, v{x}")
        E(f"v_and_b32 v{x}, 1, v0")
        E(f"v_lshl_add_u32 v{x}, v{g}, 1, v{x}")
        E("s_lshl_b32 s9, s3, 3")
        E(f"v_add_u32 v{x}, s9, v{x}")
        E(f"v_and_b32 v{y}, 0x60, v{x}")
        E(f"v_and_b32 v{A_z}, 3, v{x}")
        E(f"v_lshl_add_u32 v{y}, v{A_z}, 3, v{y}")
        E(f"v_bfe_u32 v{A_z}, v{x}, 2, 3")
        E(f"v_add_u32 v{y}, v{y}, v{A_z}")
        E(f"v_mul_u32_u24 v{x}, 187, v{y}")
        E(f"v_lshrrev_b32 v{x}, 11, v{x}")
        E(f"v_add_lshl_u32 v{y}, v{y}, v{x}, 2")
        E(f"v_bfe_u32 v{x}, v0, 1, 1")
        E(f"v_mul_u32_u24 v{x}, 768, v{x}")
        E(f"v_add_u32 v{A_ohw}, v{x}, v{y}")
        E(f"v_bfe_u32 v{x}, v0, 3, 1")
        E(f"v_mul_u32_u24 v{x}, 768, v{x}")
        E(f"v_mul_u32_u24 v{y}, 48, v{g}")
        E("s_mul_i32 s9, s84, 192")
        E(f"v_add3_u32 v{A_ohr}, v{x}, v{y}, s9")
        E(f"v_lshlrev_b32 v{A_ypw}, 4, v0")
        E(f"v_lshrrev_b32 v{x}, 5, v0")
        E(f"v_lshlrev_b32 v{x}, 8, v{x}")
        E(f"v_and_b32 v{y}, 7, v0")
        E(f"v_lshl_add_u32 v{x}, v{y}, 4, v{x}")
        E(f"v_bfe_u32 v{y}, v0, 3, 2")
        E(f"v_lshl_add_u32 v{A_ypr}, v{y}, 2, v{x}")
        E("s_and_b32 s9, s4, 3")
        E("s_lshl_b32 s9, s9, 2")
        E("s_add_u32 s9, s9, s5")
        E("s_mul_i32 s9, s9, 2560")
        E(f"s_add_u32 s9, s9, {WS_ACC}")
        E(f"v_lshl_add_u32 v{A_acc}, v0, 2, s9")
        E(f"v_mov_b32 v{A_z}, 0")

    for n in range(32):
        side(n)
        k_consume(n)
    stamp(3)
    c0, c1 = T, T + 1
    E(f"v_cvt_pk_bf16_f32 v{c0}, v{S0}, v{S0+1}")
    E(f"v_lshlrev_b32 v{S0}, 16, v{c0}")
    E(f"v_and_b32 v{S0+1}, 0xffff0000, v{c0}")
    E(f"v_mul_f32 v{S0}, {f32(128 ** -0.5)}, v{S0}")
    E(f"v_mul_f32 v{S0+1}, {f32(128 ** -0.5)}, v{S0+1}")
    E(f"v_cvt_pk_bf16_f32 v{c0}, v{S0}, v{S0+1}")
    E(f"v_lshlrev_b32 v{S0}, 16, v{c0}")
    E(f"v_and_b32 v{S0+1}, 0xffff0000, v{c0}")
    E(f"v_max_f32 v{c0}, v{S0}, v{S0+1}")
    reduce64(c0, "max", 9)
    E(f"s_mov_b32 s91, {f32(1.4426950408889634)}")
    E(f"v_subrev_f32 v{c0}, s9, v{S0}")
    E(f"v_subrev_f32 v{c1}, s9, v{S0+1}")
    E(f"v_mul_f32 v{c0}, s91, v{c0}")
    E(f"v_mul_f32 v{c1}, s91, v{c1}")
    E(f"v_exp_f32 v{c0}, v{c0}")
    E(f"v_exp_f32 v{c1}, v{c1}")
    E(f"v_add_f32 v{c0}, v{c0}, v{c1}")
    reduce64(c0, "add", 10)
    E(f"v_mov_b32 v{T+2}, s9")
    E(f"v_mov_b32 v{T+3}, s10")
    E("s_lshl_b32 s9, s3, 3")
    E(f"v_mov_b32 v{T+4}, s9")
    set_exec(1, 0)
    E(f"ds_write_b64 v{T+4}, {vr(T+2,2)} offset:{ST}")
    set_exec(0xffffffff, 0xffffffff)
    E(f"v_and_b32 v{T+4}, 15, v0")
    E(f"v_lshlrev_b32 v{T+4}, 3, v{T+4}")
    E("s_waitcnt lgkmcnt(0)")
    E("s_barrier")
    E(f"ds_read_b64 {vr(T+2,2)}, v{T+4} offset:{ST}")
    E("s_waitcnt lgkmcnt(0)")
    mW, lW = T + 14, T + 15
    E(f"v_max_f32_dpp v{mW}, v{T+2}, v{T+2} row_ror:8 row_mask:0xf bank_mask:0xf")
    for r in (4, 2, 1):
        E(f"v_max_f32_dpp v{mW}, v{mW}, v{mW} row_ror:{r} row_mask:0xf bank_mask:0xf")
    E(f"v_sub_f32 v{c0}, v{S0}, v{mW}")
    E(f"v_sub_f32 v{c1}, v{S0+1}, v{mW}")
    E(f"v_sub_f32 v{T+2}, v{T+2}, v{mW}")
    E(f"v_mul_f32 v{c0}, s91, v{c0}")
    E(f"v_mul_f32 v{c1}, s91, v{c1}")
    E(f"v_mul_f32 v{T+2}, s91, v{T+2}")
    E(f"v_exp_f32 v{c0}, v{c0}")
    E(f"v_exp_f32 v{c1}, v{c1}")
    E(f"v_exp_f32 v{T+2}, v{T+2}")
    E(f"v_cvt_pk_bf16_f32 v{PV0}, v{c0}, v{c0}")
    E(f"v_cvt_pk_bf16_f32 v{PV0+1}, v{c1}, v{c1}")
    E(f"v_mul_f32 v{lW}, v{T+2}, v{T+3}")
    for r in (8, 4, 2, 1):
        E(f"v_add_f32_dpp v{lW}, v{lW}, v{lW} row_ror:{r} row_mask:0xf bank_mask:0xf")
    E("s_lshl_b32 s9, s2, 7")
    E(f"s_add_u32 s8, s9, {WS_MBOX}")
    E(f"v_mov_b32 v{T}, 0")
    set_exec(1, 0)
    E(f"buffer_store_dwordx2 {vr(mW,2)}, v{T}, {srd(sWSs)}, s8 offen sc1", tag="S6")
    set_exec(0xffffffff, 0xffffffff)

    def v_B(n):
        t = n - 32
        mkB(n & 1, PV0 + (t >> 4), dpp=bitrev4(t & 15))

    for n in range(32, 64):
        side(n)
        v_B(n)
        r = RING + 4 * (n % W)
        e.wait(f"kv{n}")
        E(f"v_mfma_f32_16x16x32_bf16 {vr(DO)}, {vr(r)}, {vr(BB+4*(n&1))}, {vr(DO) if n > 32 else '0'}")
        issue(n + W)
    stamp(4)

    set_exec(0x00ff00ff, 0x00ff00ff)
    E(f"ds_write_b128 v{A_opw}, {vr(DO)} offset:{OP}")
    set_exec(0xffffffff, 0xffffffff)
    E("s_waitcnt lgkmcnt(0)")
    E("s_barrier")
    E(f"ds_read_b64 {vr(T,2)}, v{A_opr} offset:{OP}")
    E(f"ds_read_b32 v{T+2}, v{A_z} offset:{OM}")
    E("s_waitcnt lgkmcnt(1)")
    for r in (8, 4, 2, 1):
        E(f"v_add_f32_dpp v{T}, v{T}, v{T} row_ror:{r} row_mask:0xf bank_mask:0xf")
        E(f"v_add_f32_dpp v{T+1}, v{T+1}, v{T+1} row_ror:{r} row_mask:0xf bank_mask:0xf")
    E(f"v_cndmask_b32 v{T}, v{T}, v{T+1}, s[88:89]")
    E("s_waitcnt lgkmcnt(0)")
    E(f"v_mul_f32 v{T}, v{T}, v{T+2}")
    E(f"v_cvt_pk_bf16_f32 v{T+1}, v{T}, v{T}")
    E(f"v_and_b32 v{T+2}, 0xffff0000, v{T+1}")
    E(f"v_sub_f32 v{T}, v{T}, v{T+2}")
    E(f"v_cvt_pk_bf16_f32 v{T}, v{T}, v{T}")
    E(f"v_cndmask_b32 v{T}, v{T+1}, v{T}, s[86:87]")
    set_exec(0x000f000f, 0x000f000f)
    E(f"ds_write_b32 v{A_ohw}, v{T} offset:{OHL}")
    set_exec(0xffffffff, 0xffffffff)
    E("s_waitcnt lgkmcnt(0)")
    E("s_barrier")
    for i in range(3):
        E(f"ds_read_b128 {vr(T+4*i)}, v{A_ohr} offset:{OHL+16*i}")
    e.wait("wo10", "lgkmcnt(2)")
    mkB(0, T)
    for t in range(11):
        if t + 1 < 11:
            if t + 1 == 4:
                E("s_waitcnt lgkmcnt(1)")
            if t + 1 == 8:
                E("s_waitcnt lgkmcnt(0)")
            mkB((t + 1) & 1, T + t + 1)
        E(f"v_mfma_f32_16x16x32_bf16 {vr(DY)}, {vr(WO+4*t)}, {vr(BB+4*(t&1))}, {vr(DY)}")
    E(f"ds_write_b128 v{A_ypw}, {vr(DY)} offset:{YP}")
    E(f"v_and_b32 v{T+12}, 63, v0")
    E("s_mul_i32 s9, s5, 1280")
    E(f"v_lshl_add_u32 v{T+13}, v{T+12}, 3, s9")
    E("s_mul_i32 s9, s5, 2560")
    E(f"s_add_u32 s9, s9, {WS_ACC}")
    E(f"v_lshl_add_u32 v{T+12}, v{T+12}, 4, s9")
    E("s_waitcnt lgkmcnt(0)")
    E("s_barrier")
    E("s_cmp_ge_u32 s3, 10")
    E("s_cbranch_scc1 L_end")
    for i in range(6):
        E(f"ds_read_b32 v{T+i}, v{A_ypr} offset:{YP+(i>>1)*5120+(i&1)*128}")
    E("s_waitcnt lgkmcnt(0)")
    E(f"v_add_f32 v{T}, v{T}, v{T+1}")
    E(f"v_add_f32 v{T+2}, v{T+2}, v{T+3}")
    E(f"v_add_f32 v{T+4}, v{T+4}, v{T+5}")
    E(f"v_add_f32 v{T}, v{T}, v{T+2}")
    E(f"v_add_f32 v{T}, v{T}, v{T+4}")
    E(f"buffer_atomic_add_f32 v{T}, v{A_acc}, {srd(sWS)}, 0 offen")
    XR = RING
    E(f"s_cmp_eq_u32 s3, {SVC}")
    E("s_cbranch_scc0 L_nox")
    for k in range(3):
        E(f"buffer_load_dwordx2 {vr(XR+2*k,2)}, v{T+13}, {srd(sX)}, 0 offen offset:{k*512}")
    e.label("L_nox")
    E("s_lshl_b32 s9, s5, 12")
    E(f"s_add_u32 s8, s9, {WS_CNT}")
    E(f"v_mov_b32 v{T+1}, 1")
    E("s_waitcnt vmcnt(0)")
    E("s_barrier")
    E(f"s_cmp_eq_u32 s3, {SVC}")
    E("s_cbranch_scc0 L_end")
    stamp(5)
    set_exec(1, 0)
    E(f"buffer_atomic_add v{T+1}, v{A_z}, {srd(sWS)}, s8 offen sc0")
    set_exec(0xffffffff, 0xffffffff)
    E("s_waitcnt vmcnt(0)")
    E(f"v_readfirstlane_b32 s9, v{T+1}")
    stamp(6)
    E("s_cmp_eq_u32 s9, 63")
    E("s_cbranch_scc0 L_end")
    AC = WO - 4
    for rep in range(4):
        if rep:
            E(f"s_mov_b32 s8, {rep*10240}")
        for k in range(3):
            E(f"buffer_load_dwordx4 {vr(AC+16*k+4*rep)}, v{T+12}, {srd(sWS)}, {'s8' if rep else '0'} offen offset:{k*1024} sc1")
    E("s_waitcnt vmcnt(0)")
    for k in range(3):
        a = AC + 16 * k
        for r in range(4):
            E(f"v_add_f32 v{a+r}, v{a+r}, v{a+4+r}")
            E(f"v_add_f32 v{a+8+r}, v{a+8+r}, v{a+12+r}")
        E(f"v_lshlrev_b32 v{a+4}, 16, v{XR+2*k}")
        E(f"v_and_b32 v{a+5}, 0xffff0000, v{XR+2*k}")
        E(f"v_lshlrev_b32 v{a+6}, 16, v{XR+2*k+1}")
        E(f"v_and_b32 v{a+7}, 0xffff0000, v{XR+2*k+1}")
        for r in range(4):
            E(f"v_add_f32 v{a+r}, v{a+r}, v{a+8+r}")
        for r in range(4):
            E(f"v_add_f32 v{a+r}, v{a+r}, v{a+4+r}")
        E(f"v_cvt_pk_bf16_f32 v{a}, v{a}, v{a+1}")
        E(f"v_cvt_pk_bf16_f32 v{a+1}, v{a+2}, v{a+3}")
        if k == 2:
            set_exec(0xffffffff, 0)
        E(f"buffer_store_dwordx2 {vr(a,2)}, v{T+13}, {srd(sOUT)}, 0 offen offset:{k*512}")
    if stamps:
        set_exec(0xffffffff, 0xffffffff)
        stamp(7)
    e.label("L_end")
    E("s_endpgm")

    out = HEADER
    out += f"; @launch grid=(256,1,1) block=(1024,1,1) lds={LDS_BYTES}\n"
    out += '.amdgcn_target "amdgcn-amd-amdhsa--gfx950"\n.text\n'
    out += f".globl {KN}\n.p2align 8\n.type {KN},@function\n{KN}:\n"
    out += e.text()
    out += f""".section .rodata,"a"
.p2align 6
.amdhsa_kernel {KN}
  .amdhsa_next_free_vgpr 128
  .amdhsa_next_free_sgpr 102
  .amdhsa_accum_offset 128
  .amdhsa_group_segment_fixed_size 0
  .amdhsa_kernarg_size 96
  .amdhsa_user_sgpr_count 2
  .amdhsa_user_sgpr_kernarg_segment_ptr 1
  .amdhsa_system_sgpr_workgroup_id_x 1
  .amdhsa_float_denorm_mode_32 3
.end_amdhsa_kernel
"""
    return out


if __name__ == "__main__":
    ap = argparse.ArgumentParser()
    ap.add_argument("-o", default="k.s")
    ap.add_argument("-W", type=int, default=8)
    ap.add_argument("--wflags", default="nt")
    ap.add_argument("--dbg", type=int, default=0)
    ap.add_argument("--stamps", type=int, default=0)
    ap.add_argument("-P", default="")
    a = ap.parse_args()
    P = {k: int(v) for k, v in (x.split("=") for x in a.P.split(",") if x)}
    open(a.o, "w").write(gen(a.W, a.wflags, a.dbg, a.stamps, P))
```

```python
import struct, sys, argparse
from emit import Emitter

KN = "parallel_sum__mha_block_cached__swiglu_ffn__decode_kernel"
HEADER = open("parallel_sum__mha_block_cached__swiglu_ffn__decode.s.ref").read().split("; Override launch")[0]
LOG2E = 1.4426950408889634


def f32(x):
    return "0x%08x" % struct.unpack("<I", struct.pack("<f", x))[0]


def bitrev4(t):
    return int(f"{t:04b}"[::-1], 2)


XS = 0
QP = 10240
QF = QP + 8192
FP = QF + 256
ST = FP + 8192
WJ = ST + 32
TAGL = ST + 48
ZZ = ST + 64
HS = ZZ
FL = ZZ + 512
XCNT, HCNT, QFLAG, KCNT, HSF, WFLAG, QCNT, GCNT = FL, FL + 4, FL + 8, FL + 12, FL + 16, FL + 20, FL + 24, FL + 28
OP = ZZ + 1024
YP = OP + 2048
QS = YP
LDS_BYTES = YP + 20480
assert all(x % 16 == 0 for x in (QP, QF, FP, ST, WJ, ZZ, OP, YP))

WS_FP = 0
WS_ACC = 512 * 1024
WS_MBOX = WS_ACC + 65536
WS_EPOCH = WS_MBOX + 256 * 128
WS_DBG = 1 << 20
WS_Q = 2 << 20
ZWG = 252

FIN = 4

sK, sV, sWQ, sWO, sX, sF, sWD, sOUT, sDBG, sWS, sPC = 40, 44, 48, 52, 56, 60, 64, 68, 72, 76, 80


def srd(n):
    return f"s[{n}:{n+3}]"


def vr(a, n=4):
    return f"v[{a}:{a+n-1}]"


def gen(P=None, stamps=0):
    P = dict(P or {})
    e = Emitter()
    E = e
    M = 2
    vA, vB = 6, 7
    A_z, A_ypr, A_acc, A_o = 8, 9, 10, 11
    BB = 12
    T = 20
    W = P.get("W", 6)
    wfl = "nt"
    lab = [0]

    def newlab(p):
        lab[0] += 1
        return f"L_{p}{lab[0]}"

    def stamp(i):
        if not stamps:
            return
        save = list(e.vm)
        E("s_memrealtime s[96:97]")
        E("s_waitcnt lgkmcnt(0)")
        E(f"v_mov_b32 v{vA}, s96")
        E(f"s_mov_b32 s99, {WS_DBG + i*4}")
        E(f"v_mov_b32 v{vB}, s98")
        E(f"buffer_store_dword v{vA}, v{vB}, {srd(sWS)}, s99 offen")
        e.vm = save

    def reduce64(v, op, sdst, mid=None):
        for r in (8, 4, 2, 1):
            E(f"v_{op}_f32_dpp v{v}, v{v}, v{v} row_ror:{r} row_mask:0xf bank_mask:0xf")
        if mid:
            mid()
        E(f"v_{op}_f32_dpp v{v}, v{v}, v{v} row_bcast:15 row_mask:0xa bank_mask:0xf")
        E(f"v_{op}_f32_dpp v{v}, v{v}, v{v} row_bcast:31 row_mask:0xc bank_mask:0xf")
        E(f"v_readlane_b32 s{sdst}, v{v}, 63")

    def set_exec(lo, hi):
        if lo == hi == 0xffffffff:
            E("s_mov_b64 exec, -1")
        elif hi == 0 and lo <= 64:
            E(f"s_mov_b64 exec, {lo}")
        else:
            E(f"s_mov_b32 exec_lo, 0x{lo:08x}")
            E(f"s_mov_b32 exec_hi, 0x{hi:08x}")

    def full():
        set_exec(0xffffffff, 0xffffffff)

    def mk_srd(n, ptr, nbytes):
        E(f"s_mov_b64 s[{n}:{n+1}], s[{ptr}:{ptr+1}]")
        if nbytes is not None:
            E(f"s_mov_b32 s{n+2}, 0x{nbytes:x}")
        E(f"s_mov_b32 s{n+3}, 0x20000")

    def mkB(setidx, src, dpp=None):
        for r in range(4):
            if dpp is None:
                E(f"v_and_b32 v{BB+4*setidx+r}, v{src}, v{M+r}")
            else:
                E(f"v_and_b32_dpp v{BB+4*setidx+r}, v{src}, v{M+r} row_newbcast:{dpp} row_mask:0xf bank_mask:0xf")

    def lds_spin(off, target, tmp, reads=(), sleep=2):
        L, D = newlab("sp"), newlab("spd")
        E("s_mov_b32 s9, 0x400000")
        e.label(L)
        E(f"ds_read_b32 v{tmp}, v{A_z} offset:{off}")
        for r in reads:
            E(r)
        E("s_waitcnt lgkmcnt(0)")
        E(f"v_readfirstlane_b32 s10, v{tmp}")
        E(f"s_cmp_ge_u32 s10, {target}")
        E(f"s_cbranch_scc1 {D}")
        E("s_sub_u32 s9, s9, 1")
        E("s_cmp_eq_u32 s9, 0")
        E(f"s_cbranch_scc1 {D}")
        E(f"s_sleep {sleep}")
        E(f"s_branch {L}")
        e.label(D)

    def lds_arrive(off, tmp, sdst):
        E(f"v_mov_b32 v{tmp}, 1")
        set_exec(1, 0)
        E(f"ds_add_rtn_u32 v{tmp}, v{A_z}, v{tmp} offset:{off}")
        full()
        E("s_waitcnt lgkmcnt(0)")
        E(f"v_readfirstlane_b32 s{sdst}, v{tmp}")

    def masks(t):
        E(f"v_and_b32 v{t}, 1, v0")
        E(f"v_cmp_eq_u32 vcc, 1, v{t}")
        E(f"v_mov_b32 v{t+1}, 0xffff")
        E(f"v_mov_b32 v{t+2}, 0xffff0000")
        E(f"v_cndmask_b32 v{t}, v{t+1}, v{t+2}, vcc")
        E(f"v_bfe_u32 v{t+1}, v0, 1, 2")
        for r in range(4):
            E(f"v_cmp_eq_u32 vcc, {r}, v{t+1}")
            E(f"v_cndmask_b32 v{M+r}, 0, v{t}, vcc")

    def fin_addrs(x, y):
        E(f"v_bfe_u32 v{x}, v0, 5, 1")
        E(f"v_lshlrev_b32 v{x}, 8, v{x}")
        E(f"v_and_b32 v{y}, 7, v0")
        E(f"v_lshl_add_u32 v{x}, v{y}, 4, v{x}")
        E(f"v_bfe_u32 v{y}, v0, 3, 2")
        E(f"v_lshl_add_u32 v{x}, v{y}, 2, v{x}")
        E("s_lshl_b32 s9, s3, 10")
        E(f"s_add_u32 s9, s9, {YP - 3*1024}")
        E(f"v_add_u32 v{A_ypr}, s9, v{x}")
        E("s_and_b32 s9, s4, 3")
        E("s_mul_i32 s9, s9, 2560")
        E("s_lshl_b32 s10, s5, 14")
        E("s_add_u32 s9, s9, s10")
        E("s_lshl_b32 s10, s3, 9")
        E("s_add_u32 s9, s9, s10")
        E(f"s_add_u32 s9, s9, {WS_ACC - 3*512}")
        E(f"v_and_b32 v{x}, 63, v0")
        E(f"v_lshl_add_u32 v{A_acc}, v{x}, 2, s9")

    E("s_cmp_ge_u32 s2, 256")
    E("s_cbranch_scc1 L_end")
    E("s_load_dwordx16 s[16:31], s[0:1], 0")
    E("s_load_dwordx8 s[32:39], s[0:1], 64")
    E("v_lshrrev_b32 v1, 6, v0")
    E(f"v_mov_b32 v{A_z}, 0")
    E("v_readfirstlane_b32 s3, v1")
    E(f"v_and_b32 v{T}, 63, v0")
    E("s_and_b32 s4, s2, 31")
    E("s_lshr_b32 s5, s2, 6")
    E("s_bfe_u32 s6, s2, 0x10005")
    E("s_lshl_b32 s7, s4, 1")
    E("s_add_u32 s7, s7, s6")
    E(f"s_mov_b32 s91, {f32(LOG2E)}")
    if stamps:
        E("s_lshl_b32 s98, s2, 4")
        E("s_add_u32 s98, s98, s3")
        E("s_lshl_b32 s98, s98, 6")
    E("s_and_b32 s15, s3, 3")
    E("s_cmp_lt_u32 s3, 4")
    E("s_cbranch_scc1 L_helper")
    hist0 = list(e.hist)

    vKV = 1
    Q = 36
    DO = 40
    S0 = 44
    XR = 52
    vXO, vAR, vTAG = 58, 59, 60
    SETS = [64 + 4 * i for i in range(P.get("NS", 48))]
    E("s_lshl_b32 s10, s5, 6")
    E("s_add_u32 s10, s10, s7")
    E("s_lshl_b32 s10, s10, 19")
    E("s_lshl_b32 s11, s15, 12")
    E("s_add_u32 s10, s10, s11")
    E(f"v_lshl_add_u32 v{vKV}, v{T}, 4, s10")
    E(f"s_mov_b32 s{sK+2}, 0x8000000")
    E(f"s_mov_b32 s{sK+3}, 0x20000")
    E("s_waitcnt lgkmcnt(0)")
    E(f"s_mov_b64 s[{sK}:{sK+1}], s[18:19]")
    free = list(SETS)
    where = {}
    st = {"i": 0, "so": None}

    def issue():
        n = st["i"]
        if n >= 256 or not free:
            return False
        st["i"] += 1
        if n >= W:
            e.wait(f"kv{n-W}")
        free.sort()
        r = free.pop(0)
        where[n] = r
        t = n & 127
        so = (t >> 2) * 16384
        if so and st["so"] != so:
            E(f"s_mov_b32 s8, {so}")
            st["so"] = so
        E(f"buffer_load_dwordx4 {vr(r)}, v{vKV}, {srd(sK if n < 128 else sV)}, {'s8' if so else '0'} offen offset:{(t&3)*1024} nt", tag=f"kv{n}")
        return True

    for _ in range(W):
        issue()
    mk_srd(sV, 20, 0x8000000)
    mk_srd(sWS, 38, 0x20000000)
    mk_srd(sOUT, 34, 5120)
    mk_srd(sX, 16, 5120)
    E("s_mov_b32 s86, 0xcccccccc")
    E("s_mov_b32 s87, 0xcccccccc")
    E("s_mov_b32 s88, 0xaaaaaaaa")
    E("s_mov_b32 s89, 0xaaaaaaaa")
    masks(T + 1)
    fin_addrs(T + 1, T + 2)
    E(f"v_and_b32 v{T+1}, 7, v0")
    E(f"v_bfe_u32 v{T+2}, v0, 4, 2")
    E(f"v_lshl_add_u32 v{T+1}, v{T+2}, 3, v{T+1}")
    E("s_lshl_b32 s9, s15, 9")
    E(f"v_lshl_add_u32 v{A_o}, v{T+1}, 4, s9")
    E("s_mul_i32 s9, s5, 1280")
    E(f"v_lshl_add_u32 v{vXO}, v{T}, 3, s9")
    E("s_lshl_b32 s9, s5, 14")
    E(f"s_add_u32 s9, s9, {WS_ACC}")
    E(f"v_lshl_add_u32 v{vAR}, v{T}, 4, s9")
    E(f"v_and_b32 v{T+8}, 15, v0")
    E(f"v_lshlrev_b32 v{T+8}, 4, v{T+8}")
    stamp(0)
    E("s_barrier")
    while issue():
        pass
    stamp(1)
    lds_spin(QFLAG, 1, T + 9, [f"ds_read_b128 {vr(Q)}, v{T+8} offset:{QF}", f"ds_read_b32 v{vTAG}, v{A_z} offset:{TAGL}"], sleep=1)
    stamp(2)

    def k_consume(n):
        r = where[n]
        a = T + (n & 1)
        e.wait(f"kv{n}")
        E(f"v_dot2_f32_bf16 v{a}, v{r}, v{Q}, 0")
        for i in range(1, 4):
            E(f"v_dot2_f32_bf16 v{a}, v{r+i}, v{Q+i}, v{a}")
        free.append(r)

    def k_post(n):
        if n & 1:
            b = T + 2 + ((n >> 1) & 1)
            E(f"v_add_f32_dpp v{b}, v{T}, v{T} row_shl:8 row_mask:0xf bank_mask:0x3")
            E(f"v_add_f32_dpp v{b}, v{T+1}, v{T+1} row_shr:8 row_mask:0xf bank_mask:0xc")
        if (n & 3) == 3:
            d = T + 4 + ((n >> 2) & 1)
            E(f"v_add_f32_dpp v{d}, v{T+2}, v{T+2} row_shl:4 row_mask:0xf bank_mask:0x5")
            E(f"v_add_f32_dpp v{d}, v{T+3}, v{T+3} row_shr:4 row_mask:0xf bank_mask:0xa")
            E(f"v_add_f32_dpp v{d}, v{d}, v{d} quad_perm:[2,3,0,1] row_mask:0xf bank_mask:0xf")
        if (n & 7) == 7:
            ee = T + 6 + ((n >> 3) & 1)
            E(f"v_cndmask_b32 v{ee}, v{T+4}, v{T+5}, s[86:87]")
            E(f"v_add_f32_dpp v{ee}, v{ee}, v{ee} quad_perm:[1,0,3,2] row_mask:0xf bank_mask:0xf")
        if (n & 15) == 15:
            E(f"v_cndmask_b32 v{S0 + (n >> 4)}, v{T+6}, v{T+7}, s[88:89]")

    catch = P.get("catch", 3)
    first = P.get("first", W)
    cnt = 0
    for n in range(128):
        k_consume(n)
        cnt += 1
        lag = st["i"] - (n + 1)
        if n < first or lag < W or cnt >= catch:
            issue()
            cnt = 0
        k_post(n)
    for i in range(0, 8, 2):
        E(f"v_cvt_pk_bf16_f32 v{T+i}, v{S0+i}, v{S0+i+1}")
    for i in range(0, 8, 2):
        E(f"v_lshlrev_b32 v{S0+i}, 16, v{T+i}")
        E(f"v_and_b32 v{S0+i+1}, 0xffff0000, v{T+i}")
    for i in range(8):
        E(f"v_mul_f32 v{S0+i}, {f32(128 ** -0.5)}, v{S0+i}")
    for i in range(0, 8, 2):
        E(f"v_cvt_pk_bf16_f32 v{T+i}, v{S0+i}, v{S0+i+1}")
    for i in range(0, 8, 2):
        E(f"v_lshlrev_b32 v{S0+i}, 16, v{T+i}")
        E(f"v_and_b32 v{S0+i+1}, 0xffff0000, v{T+i}")
    E(f"v_max3_f32 v{T}, v{S0}, v{S0+1}, v{S0+2}")
    E(f"v_max3_f32 v{T+1}, v{S0+3}, v{S0+4}, v{S0+5}")
    E(f"v_max3_f32 v{T}, v{T}, v{S0+6}, v{S0+7}")
    E(f"v_max_f32 v{T}, v{T}, v{T+1}")
    reduce64(T, "max", 12, mid=issue)
    for i in range(8):
        E(f"v_subrev_f32 v{S0+i}, s12, v{S0+i}")
    for i in range(8):
        E(f"v_mul_f32 v{S0+i}, s91, v{S0+i}")
    for i in range(8):
        E(f"v_exp_f32 v{S0+i}, v{S0+i}")
    E(f"v_add_f32 v{T}, v{S0}, v{S0+1}")
    E(f"v_add_f32 v{T+1}, v{S0+2}, v{S0+3}")
    E(f"v_add_f32 v{T+2}, v{S0+4}, v{S0+5}")
    E(f"v_add_f32 v{T+3}, v{S0+6}, v{S0+7}")
    E(f"v_add_f32 v{T}, v{T}, v{T+1}")
    E(f"v_add_f32 v{T+2}, v{T+2}, v{T+3}")
    for i in range(8):
        E(f"v_cvt_pk_bf16_f32 v{S0+i}, v{S0+i}, v{S0+i}")
    E(f"v_add_f32 v{T}, v{T}, v{T+2}")
    reduce64(T, "add", 13, mid=issue)
    E(f"v_mov_b32 v{T+2}, s12")
    E(f"v_mov_b32 v{T+3}, s13")
    E("s_lshl_b32 s9, s15, 3")
    E(f"v_mov_b32 v{T+5}, s9")
    E(f"v_mov_b32 v{T+6}, 1")
    set_exec(1, 0)
    E(f"ds_write_b64 v{T+5}, {vr(T+2,2)} offset:{ST}")
    E(f"ds_add_u32 v{A_z}, v{T+6} offset:{KCNT}")
    full()
    stamp(3)
    mkB(0, S0, dpp=bitrev4(0))
    for n in range(128, 256):
        t = n - 128
        if t + 1 < 128:
            mkB((t + 1) & 1, S0 + ((t + 1) >> 4), dpp=bitrev4((t + 1) & 15))
        e.wait(f"kv{n}")
        E(f"v_mfma_f32_16x16x32_bf16 {vr(DO)}, {vr(where[n])}, {vr(BB+4*(t&1))}, {vr(DO) if t else '0'}")
        free.append(where[n])
        if st["i"] - (n + 1) < W:
            issue()
        if t == 100:
            for k in range(3):
                E(f"buffer_load_dwordx2 {vr(XR+2*k,2)}, v{vXO}, {srd(sX)}, 0 offen offset:{k*512}")
    stamp(4)
    set_exec(0x00ff00ff, 0x00ff00ff)
    E(f"ds_write_b128 v{A_o}, {vr(DO)} offset:{OP}")
    full()
    E("s_waitcnt lgkmcnt(0)")
    E("s_barrier")
    stamp(8)
    E("s_branch L_T3")

    e.hist = hist0
    e.vm = []
    e.label("L_helper")
    DY = 36
    WD = 56
    WO = 96
    WQ, FA, DQ, DF = WO, WO + 20, WO + 40, WO + 48
    E(f"v_lshlrev_b32 v{T+6}, 2, v0")
    E(f"ds_write_b32 v{T+6}, v{A_z} offset:{ZZ}")
    E(f"v_and_b32 v{T+1}, 15, v0")
    E(f"v_bfe_u32 v{T+2}, v0, 4, 2")
    E("s_mul_i32 s9, s15, 1280")
    E(f"v_lshl_add_u32 v{vA}, v{T}, 4, s9")
    E(f"v_lshl_add_u32 v{vB}, v{T}, 2, s9")
    E("s_lshr_b32 s11, s2, 5")
    E("s_mul_i32 s12, s11, 80")
    E("s_mul_i32 s13, s15, 20")
    E("s_add_u32 s12, s12, s13")
    E("s_lshl_b32 s10, s12, 13")
    E("s_lshl_b32 s13, s4, 8")
    E("s_add_u32 s10, s10, s13")
    E(f"v_mul_u32_u24 v{T+3}, {5*8192}, v{T+2}")
    E(f"v_lshl_add_u32 v{T+3}, v{T+1}, 4, v{T+3}")
    E(f"v_add_u32 v{T+3}, s10, v{T+3}")
    E("s_and_b32 s13, s2, 3")
    E("s_mul_i32 s13, s13, 160")
    E("s_mul_i32 s14, s15, 40")
    E("s_add_u32 s13, s13, s14")
    E("s_lshr_b32 s84, s2, 2")
    E("s_cmp_ge_u32 s84, 27")
    E("s_cselect_b32 s14, 27, 0")
    E("s_sub_u32 s14, s84, s14")
    E("s_lshl_b32 s14, s14, 7")
    E("s_mul_i32 s85, s13, 3456")
    E("s_add_u32 s14, s14, s85")
    E(f"v_lshrrev_b32 v{T+4}, 3, v{T}")
    E(f"v_mul_u32_u24 v{T+4}, 3456, v{T+4}")
    E(f"v_and_b32 v{T+5}, 7, v0")
    E(f"v_lshl_add_u32 v{T+4}, v{T+5}, 4, v{T+4}")
    E(f"v_add_u32 v{T+4}, s14, v{T+4}")
    E("s_cmp_lt_u32 s2, 216")
    E(f"s_cselect_b32 s{sF+2}, {0 if P.get('noffn') else 640*3456}, 0")
    E(f"s_mov_b32 s{sF+3}, 0x20000")
    E(f"s_mov_b32 s{sX+2}, 5120")
    E(f"s_mov_b32 s{sX+3}, 0x20000")
    E(f"s_mov_b32 s{sWQ+2}, {0 if P.get('nowq') else 640*8192}")
    E(f"s_mov_b32 s{sWQ+3}, 0x20000")
    E("s_waitcnt lgkmcnt(0)")
    E(f"s_mov_b64 s[{sX}:{sX+1}], s[16:17]")
    E(f"buffer_load_dwordx4 {vr(BB)}, v{vA}, {srd(sX)}, 0 offen", tag="x")
    E(f"buffer_load_dword v{BB+4}, v{vB}, {srd(sX)}, 0 offen offset:1024", tag="x")
    E(f"s_load_dword s90, s[38:39], {WS_EPOCH}")
    E(f"s_mov_b64 s[{sWQ}:{sWQ+1}], s[22:23]")
    for t in range(5):
        if t:
            E(f"s_mov_b32 s8, {t*8192}")
        E(f"buffer_load_dwordx4 {vr(WQ+4*t)}, v{T+3}, {srd(sWQ)}, {'s8' if t else '0'} offen {wfl}", tag=f"wq{t}")
    E("s_cmp_ge_u32 s84, 27")
    E(f"s_cselect_b64 s[{sF}:{sF+1}], s[30:31], s[28:29]")
    for u in range(5):
        if u:
            E(f"s_mov_b32 s8, {u*8*3456}")
        E(f"buffer_load_dwordx4 {vr(FA+4*u)}, v{T+4}, {srd(sF)}, {'s8' if u else '0'} offen nt", tag=f"f{u}")
    if P.get("codepf", 1):
        E(f"s_getpc_b64 s[{sPC}:{sPC+1}]")
        e.label("L_pc")
        E(f"s_sub_u32 s{sPC}, s{sPC}, L_pc-{KN}")
        E(f"s_subb_u32 s{sPC+1}, s{sPC+1}, 0")
        E("s_cmp_lt_u32 s2, %d" % P.get("codewg", 16))
        E(f"s_cselect_b32 s{sPC+2}, L_codeend-{KN}, 0")
        E(f"s_mov_b32 s{sPC+3}, 0x20000")
        E(f"v_lshlrev_b32 v{T+7}, 7, v0")
        E(f"buffer_load_dword v{T+15}, v{T+7}, {srd(sPC)}, 0 offen")
    mk_srd(sWS, 38, 0x20000000)
    mk_srd(sOUT, 34, 5120)
    mk_srd(sWO, 24, 0 if P.get('nowo') else 4096 * 1280)
    mk_srd(sWD, 32, 0 if P.get('nowo') else 1728 * 1280)
    E("s_barrier")
    stamp(0)
    masks(T + 6)
    X = WD
    t0, t1, t2, t3, t4 = WD + 10, WD + 11, WD + 12, WD + 13, WD + 14
    E(f"v_lshlrev_b32 v{t3}, 5, v{T}")
    E("s_mul_i32 s9, s15, 2560")
    E(f"v_add_u32 v{t3}, s9, v{t3}")
    E(f"v_lshlrev_b32 v{t4}, 3, v{T}")
    E(f"v_add_u32 v{t4}, s9, v{t4}")
    E(f"s_mov_b32 s10, {f32(640.0)}")
    E(f"s_mov_b32 s14, {f32(1.0/640.0)}")
    E(f"v_bfe_u32 v{vA}, v0, 3, 1")
    E(f"v_mul_u32_u24 v{vA}, 2560, v{vA}")
    E(f"v_mul_u32_u24 v{vB}, 20, v{T+2}")
    E("s_lshl_b32 s9, s12, 2")
    E(f"v_add3_u32 v{vA}, v{vA}, v{vB}, s9")
    E(f"v_lshrrev_b32 v{vB}, 3, v{T}")
    E("s_lshl_b32 s9, s13, 2")
    E(f"v_lshl_add_u32 v{vB}, v{vB}, 2, s9")
    vBf = T + 14
    E(f"v_mov_b32 v{vBf}, v{vB}")
    e.wait("x")
    for i in range(5):
        E(f"v_lshlrev_b32 v{X+2*i}, 16, v{BB+i}")
        E(f"v_and_b32 v{X+2*i+1}, 0xffff0000, v{BB+i}")
    E(f"v_add_f32 v{t0}, v{X}, v{X+1}")
    E(f"v_add_f32 v{t1}, v{X+2}, v{X+3}")
    for i in range(4, 10, 2):
        E(f"v_add_f32 v{t0}, v{t0}, v{X+i}")
        E(f"v_add_f32 v{t1}, v{t1}, v{X+i+1}")
    E(f"v_add_f32 v{t0}, v{t0}, v{t1}")
    reduce64(t0, "add", 9)

    def div640(dst, tmp):
        E(f"v_mov_b32 v{tmp}, s9")
        E(f"v_mul_f32 v{dst}, s14, v{tmp}")
        E(f"v_fma_f32 v{tmp}, -v{dst}, s10, v{tmp}")
        E(f"v_fma_f32 v{dst}, v{tmp}, s14, v{dst}")

    div640(t2, t1)
    E(f"v_sub_f32 v{BB}, v{X}, v{t2}")
    E(f"v_sub_f32 v{BB+1}, v{X+1}, v{t2}")
    E(f"v_mul_f32 v{t0}, v{BB}, v{BB}")
    E(f"v_mul_f32 v{t1}, v{BB+1}, v{BB+1}")
    for i in range(2, 10, 2):
        E(f"v_sub_f32 v{BB}, v{X+i}, v{t2}")
        E(f"v_sub_f32 v{BB+1}, v{X+i+1}, v{t2}")
        E(f"v_fmac_f32 v{t0}, v{BB}, v{BB}")
        E(f"v_fmac_f32 v{t1}, v{BB+1}, v{BB+1}")
    E(f"v_add_f32 v{t0}, v{t0}, v{t1}")
    reduce64(t0, "add", 9)
    div640(t0, t1)
    E(f"v_cvt_pk_bf16_f32 v{t1}, v{t2}, v{t0}")
    E(f"v_lshlrev_b32 v{t2}, 16, v{t1}")
    E(f"v_and_b32 v{t0}, 0xffff0000, v{t1}")
    E(f"v_add_f32 v{t0}, {f32(1e-5)}, v{t0}")
    E(f"v_cvt_pk_bf16_f32 v{t0}, v{t0}, v{t0}")
    E(f"v_and_b32 v{t0}, 0xffff0000, v{t0}")
    E(f"v_sqrt_f32 v{t0}, v{t0}")
    E(f"v_cvt_pk_bf16_f32 v{t0}, v{t0}, v{t0}")
    E(f"v_and_b32 v{t0}, 0xffff0000, v{t0}")
    E(f"v_rcp_f32 v{t0}, v{t0}")
    for i in range(0, 10, 2):
        E(f"v_sub_f32 v{X+i}, v{X+i}, v{t2}")
        E(f"v_sub_f32 v{X+i+1}, v{X+i+1}, v{t2}")
        E(f"v_cvt_pk_bf16_f32 v{t1}, v{X+i}, v{X+i+1}")
        E(f"v_lshlrev_b32 v{X+i}, 16, v{t1}")
        E(f"v_and_b32 v{X+i+1}, 0xffff0000, v{t1}")
        E(f"v_mul_f32 v{X+i}, v{X+i}, v{t0}")
        E(f"v_mul_f32 v{X+i+1}, v{X+i+1}, v{t0}")
        E(f"v_cvt_pk_bf16_f32 v{X+i}, v{X+i}, v{X+i}")
        E(f"v_cvt_pk_bf16_f32 v{X+i+1}, v{X+i+1}, v{X+i+1}")
    E(f"v_mov_b32 v{t1}, 1")
    E(f"ds_write_b128 v{t3}, {vr(X)} offset:{XS}")
    E(f"ds_write_b128 v{t3}, {vr(X+4)} offset:{XS+16}")
    E(f"ds_write_b64 v{t4}, {vr(X+8,2)} offset:{XS+2048}")
    set_exec(1, 0)
    E(f"ds_add_u32 v{A_z}, v{t1} offset:{XCNT}")
    full()
    QV, FV = WO + 64, WO + 76
    E(f"v_lshl_add_u32 v{T+11}, v{T+2}, 3, v{T+5}")
    E(f"v_lshlrev_b32 v{T+11}, 4, v{T+11}")
    E(f"v_bfe_u32 v{T+10}, v0, 3, 1")
    E(f"v_lshl_add_u32 v{T+11}, v{T+10}, 9, v{T+11}")
    E("s_lshl_b32 s85, s15, 11")
    E(f"v_add_u32 v{T+11}, s85, v{T+11}")
    E(f"v_lshlrev_b32 v{T+10}, 4, v{T}")
    E(f"v_lshlrev_b32 v{T+12}, 3, v0")
    rd = [f"ds_read_b32 v{QV+5*p+t}, v{vA} offset:{XS+p*5120+4*t}" for p in range(2) for t in range(5)]
    lds_spin(XCNT, 4, T + 9, rd, sleep=1)
    E("s_mul_i32 s90, s90, 1664525")
    E("s_add_u32 s90, s90, 1013904223")
    seq = [(t, p) for t in range(5) for p in range(2)]
    mkB(0, QV)
    for i, (t, p) in enumerate(seq):
        if i + 1 < len(seq):
            mkB((i + 1) & 1, QV + 5 * seq[i + 1][1] + seq[i + 1][0])
        if p == 0:
            e.wait(f"wq{t}")
        E(f"v_mfma_f32_16x16x32_bf16 {vr(DQ+4*p)}, {vr(WQ+4*t)}, {vr(BB+4*(i&1))}, {vr(DQ+4*p) if t else '0'}")
    for b in range(2):
        for u in range(5):
            E(f"ds_read_b32 v{FV+5*b+u}, v{vB} offset:{XS+b*2560+u*32}")
    E(f"v_mov_b32 v{T+9}, 1")
    for p in range(2):
        E(f"ds_write_b128 v{T+11}, {vr(DQ+4*p)} offset:{QP+p*1024}")
    set_exec(1, 0)
    E(f"ds_add_u32 v{A_z}, v{T+9} offset:{QCNT}")
    full()
    E("s_lshl_b32 s8, s4, 2")
    E("s_add_u32 s8, s8, s15")
    E("s_lshl_b32 s8, s8, 3")
    E("s_add_u32 s8, s8, s11")
    E("s_lshl_b32 s8, s8, 10")
    E(f"s_add_u32 s8, s8, {WS_Q}")
    E("s_waitcnt lgkmcnt(0)")
    R = QV
    lds_spin(QCNT, 4, T + 9, [f"ds_read_b64 {vr(R+2*k,2)}, v{T+12} offset:{QP+k*2048}" for k in range(4)], sleep=1)
    E(f"v_add_f32 v{R}, v{R}, v{R+2}")
    E(f"v_add_f32 v{R+1}, v{R+1}, v{R+3}")
    E(f"v_add_f32 v{R+4}, v{R+4}, v{R+6}")
    E(f"v_add_f32 v{R+5}, v{R+5}, v{R+7}")
    E(f"v_add_f32 v{DQ}, v{R}, v{R+4}")
    E(f"v_add_f32 v{DQ+2}, v{R+1}, v{R+5}")
    E(f"v_mov_b32 v{DQ+1}, s90")
    E(f"v_mov_b32 v{DQ+3}, s90")
    if not P.get("noq"):
        E(f"buffer_store_dwordx4 {vr(DQ)}, v{T+10}, {srd(sWS)}, s8 offen sc1", tag="qst")
    stamp(4)
    for b in range(2, 4):
        for u in range(5):
            E(f"ds_read_b32 v{FV+5*b+u}, v{vBf} offset:{XS+b*2560+u*32}")
    seq = [(u, b) for u in range(5) for b in range(4)]
    E("s_waitcnt lgkmcnt(0)")
    mkB(0, FV)
    for i, (u, b) in enumerate(seq):
        if i + 1 < len(seq):
            mkB((i + 1) & 1, FV + 5 * seq[i + 1][1] + seq[i + 1][0])
        if b == 0:
            e.wait(f"f{u}")
        E(f"v_mfma_f32_16x16x32_bf16 {vr(DF+4*b)}, {vr(FA+4*u)}, {vr(BB+4*(i&1))}, {vr(DF+4*b) if u else '0'}")
    E(f"v_bfe_u32 v{vB}, v0, 4, 1")
    E(f"v_lshl_add_u32 v{vA}, v{vB}, 3, v{T+5}")
    E(f"v_lshlrev_b32 v{vA}, 4, v{vA}")
    E(f"v_bfe_u32 v{vB}, v0, 5, 1")
    E(f"v_lshl_add_u32 v{vA}, v{vB}, 10, v{vA}")
    E(f"v_add_u32 v{vA}, s85, v{vA}")
    set_exec(0x00ff00ff, 0xff00ff00)
    for b in range(4):
        E(f"ds_write_b128 v{vA}, {vr(DF+4*b)} offset:{FP+b*256}")
    full()
    wothr = P.get("wothr", 3)
    E(f"v_lshlrev_b32 v{T+3}, 4, v{T+1}")
    E(f"v_mul_u32_u24 v{T+4}, {2*1280}, v{T+2}")
    E(f"v_add_u32 v{T+3}, v{T+3}, v{T+4}")
    E("s_mul_i32 s9, s7, 27")
    E("s_lshl_b32 s10, s15, 3")
    E("s_add_u32 s9, s9, s10")
    E("s_mul_i32 s9, s9, 1280")
    E(f"v_add_u32 v{T+4}, s9, v{T+3}")
    E(f"v_lshl_add_u32 v{T+8}, v{T+2}, 1, s10")
    E(f"v_cmp_lt_u32 vcc, 26, v{T+8}")
    E(f"v_mov_b32 v{T+9}, 0x7fff0000")
    E(f"v_cndmask_b32 v{T+4}, v{T+4}, v{T+9}, vcc")
    E("s_lshl_b32 s9, s4, 7")
    E("s_lshl_b32 s10, s15, 5")
    E("s_add_u32 s9, s9, s10")
    E("s_mul_i32 s9, s9, 1280")
    E(f"v_add_u32 v{T+3}, s9, v{T+3}")
    tags = []

    def paced(text, tag):
        if wothr and len(tags) >= wothr:
            e.wait(tags[-wothr])
        E(text, tag=tag)
        tags.append(tag)

    wdl = [(k, cb) for k in range(2) for cb in range(5)]
    qdel = P.get("qdel", 10)

    def wd_load(k, cb):
        paced(f"buffer_load_dwordx4 {vr(WD+20*k+4*cb)}, v{T+4}, {srd(sWD)}, 0 offen offset:{k*1280+cb*256} {wfl}", f"wd{k}_{cb}")

    for k, cb in wdl[:qdel]:
        wd_load(k, cb)
    E("s_lshl_b32 s8, s4, 2")
    E("s_add_u32 s8, s8, s5")
    E("s_lshl_b32 s8, s8, 13")
    E("s_add_u32 s8, s8, s85")
    E(f"s_add_u32 s8, s8, {WS_Q}")
    G = WQ
    for k in range(0 if P.get("noq") else 2):
        E(f"buffer_load_dwordx4 {vr(G+4*k)}, v{T+10}, {srd(sWS)}, s8 offen offset:{k*1024} sc1")
    E("s_mov_b32 s9, %d" % (1 if P.get("noq") else 0x100000))
    e.label("L_qpoll")
    E("s_waitcnt vmcnt(0)")
    E(f"v_xor_b32 v{G+1}, s90, v{G+1}")
    E(f"v_xor_b32 v{G+3}, s90, v{G+3}")
    E(f"v_xor_b32 v{G+5}, s90, v{G+5}")
    E(f"v_xor_b32 v{G+7}, s90, v{G+7}")
    E(f"v_or3_b32 v{G+1}, v{G+1}, v{G+3}, v{G+5}")
    E(f"v_or_b32 v{G+1}, v{G+1}, v{G+7}")
    E(f"v_cmp_ne_u32 vcc, 0, v{G+1}")
    E("s_sub_u32 s9, s9, 1")
    E("s_nop 3")
    E("s_cbranch_vccz L_qok")
    E("s_cmp_eq_u32 s9, 0")
    E("s_cbranch_scc1 L_qok")
    E("s_sleep %d" % P.get("qsleep", 4))
    for k in range(2):
        E(f"buffer_load_dwordx4 {vr(G+4*k)}, v{T+10}, {srd(sWS)}, s8 offen offset:{k*1024} sc1")
    E("s_branch L_qpoll")
    e.label("L_qok")
    e.vm = []
    E(f"v_add_f32 v{G}, v{G}, v{G+4}")
    E(f"v_add_f32 v{G+1}, v{G+2}, v{G+6}")
    E(f"ds_write_b64 v{T+12}, {vr(G,2)} offset:{QS}")
    lds_arrive(GCNT, T + 9, 9)
    E("s_cmp_eq_u32 s9, 3")
    E("s_cbranch_scc0 L_notq")
    E(f"v_lshlrev_b32 v{T+13}, 3, v{T}")
    for k in range(4):
        E(f"ds_read_b64 {vr(G+2*k,2)}, v{T+13} offset:{QS+k*512}")
    F = WO + 32
    for k in range(8):
        E(f"ds_read_b128 {vr(F+4*k)}, v{T+10} offset:{FP+k*1024}")
    E(f"v_lshlrev_b32 v{vA}, 5, v{T+2}")
    E(f"v_and_b32 v{vB}, 1, v0")
    E(f"v_lshl_add_u32 v{vA}, v{vB}, 4, v{vA}")
    E(f"v_bfe_u32 v{vB}, v0, 1, 3")
    E(f"v_add_lshl_u32 v{vA}, v{vA}, v{vB}, 1")
    E(f"v_mov_b32 v{T+9}, 1")
    E("s_waitcnt lgkmcnt(8)")
    E(f"v_add_f32 v{G}, v{G}, v{G+2}")
    E(f"v_add_f32 v{G+1}, v{G+1}, v{G+3}")
    E(f"v_add_f32 v{G+4}, v{G+4}, v{G+6}")
    E(f"v_add_f32 v{G+5}, v{G+5}, v{G+7}")
    E(f"v_add_f32 v{G}, v{G}, v{G+4}")
    E(f"v_add_f32 v{G+1}, v{G+1}, v{G+5}")
    E(f"v_cvt_pk_bf16_f32 v{G}, v{G}, v{G+1}")
    E(f"ds_write_b16 v{vA}, v{G} offset:{QF}")
    E(f"ds_write_b16_d16_hi v{vA}, v{G} offset:{QF+16}")
    E(f"v_mov_b32 v{G+1}, s90")
    E(f"ds_write_b32 v{A_z}, v{G+1} offset:{TAGL}")
    E(f"ds_write_b32 v{A_z}, v{T+9} offset:{QFLAG}")
    E("s_waitcnt lgkmcnt(0)")
    E("s_cmp_lt_u32 s2, 216")
    E("s_cbranch_scc0 L_nofpub")
    for r in range(16):
        E(f"v_add_f32 v{F+r}, v{F+r}, v{F+16+r}")
    for r in range(8):
        E(f"v_add_f32 v{F+r}, v{F+r}, v{F+8+r}")
    for r in range(4):
        E(f"v_add_f32 v{F+8+2*r}, v{F+r}, v{F+4+r}")
        E(f"v_mov_b32 v{F+9+2*r}, s90")
    E(f"v_lshlrev_b32 v{T+13}, 5, v{T}")
    E("s_lshl_b32 s8, s2, 11")
    E(f"buffer_store_dwordx4 {vr(F+8)}, v{T+13}, {srd(sWS)}, s8 offen sc1")
    E(f"buffer_store_dwordx4 {vr(F+12)}, v{T+13}, {srd(sWS)}, s8 offen offset:16 sc1")
    E("s_branch L_notq")
    e.label("L_nofpub")
    E(f"s_cmp_ge_u32 s2, {ZWG}")
    E("s_cbranch_scc0 L_notq")
    for r in range(4):
        E(f"v_mov_b32 v{F+r}, 0")
    E(f"s_sub_u32 s8, s2, {ZWG}")
    E("s_lshl_b32 s8, s8, 14")
    E(f"s_add_u32 s8, s8, {WS_ACC}")
    for k in range(11):
        E(f"buffer_store_dwordx4 {vr(F)}, v{T+10}, {srd(sWS)}, s8 offen offset:{(k%4)*1024} sc1")
        if k % 4 == 3:
            E("s_add_u32 s8, s8, 4096")
    E(f"v_mov_b32 v{F+4}, s90")
    E("s_add_u32 s8, s8, 4096")
    E("s_waitcnt vmcnt(0)")
    set_exec(1, 0)
    E(f"buffer_store_dword v{F+4}, v{A_z}, {srd(sWS)}, s8 offen sc1")
    full()
    e.label("L_notq")
    E("s_nop 1")
    e.vm = []
    stamp(1)
    for k, cb in wdl[qdel:]:
        wd_load(k, cb)
    for t in range(8):
        so = ((t & 3) * 8 + (t >> 2)) * 1280
        if so:
            E(f"s_mov_b32 s8, {so}")
        for cb in range(5):
            paced(f"buffer_load_dwordx4 {vr(WO+20*t+4*cb)}, v{T+3}, {srd(sWO)}, {'s8' if so else '0'} offen offset:{cb*256} {wfl}", f"wo{t}_{cb}")
    fin_addrs(T + 6, T + 7)
    stamp(2)
    E(f"v_bfe_u32 v{T+9}, v0, 3, 1")
    E(f"v_lshlrev_b32 v{T+9}, 8, v{T+9}")
    E(f"v_lshl_add_u32 v{T+8}, v{T+8}, 2, v{T+9}")
    E("s_cmp_eq_u32 s15, 0")
    E("s_cbranch_scc0 L_nosvc1")
    save = list(e.vm)
    a0, a1, hh = T + 9, T + 10, DY
    E(f"v_lshlrev_b32 v{T+11}, 2, v{T}")
    E("s_mul_i32 s9, s7, 27")
    E(f"v_add_u32 v{a0}, s9, v{T}")
    E(f"v_lshrrev_b32 v{a1}, 6, v{a0}")
    E(f"v_lshlrev_b32 v{a1}, 13, v{a1}")
    E(f"v_bfe_u32 v{hh}, v{a0}, 5, 1")
    E(f"v_lshl_add_u32 v{a1}, v{hh}, 8, v{a1}")
    E(f"v_and_b32 v{hh}, 7, v{a0}")
    E(f"v_lshl_add_u32 v{a1}, v{hh}, 5, v{a1}")
    E(f"v_bfe_u32 v{hh}, v{a0}, 3, 2")
    E(f"v_lshl_add_u32 v{a1}, v{hh}, 3, v{a1}")
    E("s_lshl_b32 s8, s5, 9")
    E(f"v_add_u32 v{a1}, s8, v{a1}")
    E("s_lshl_b32 s14, s5, 14")
    E(f"s_add_u32 s14, s14, {WS_ACC + 12288}")
    E("s_mov_b32 s9, 0x100000")
    set_exec(0x07ffffff, 0)
    e.label("L_poll")
    for m in range(2):
        for s in range(4):
            if s % 2 == 0:
                E(f"s_mov_b32 s8, {m*27*8192 + s*2048}")
            E(f"buffer_load_dwordx2 {vr(hh+8*m+2*s,2)}, v{a1}, {srd(sWS)}, s8 offen offset:{(s%2)*2048} sc1")
    E(f"buffer_load_dword v{hh+16}, v{A_z}, {srd(sWS)}, s14 offen sc1")
    E("s_waitcnt vmcnt(0)")
    E(f"v_xor_b32 v{hh+16}, s90, v{hh+16}")
    for k in range(8):
        E(f"v_xor_b32 v{hh+2*k+1}, s90, v{hh+2*k+1}")
    for k in range(0, 8, 2):
        E(f"v_or3_b32 v{hh+16}, v{hh+16}, v{hh+2*k+1}, v{hh+2*k+3}")
    E(f"v_cmp_ne_u32 vcc, 0, v{hh+16}")
    E("s_sub_u32 s9, s9, 1")
    E("s_nop 3")
    E("s_cbranch_vccz L_polldone")
    E("s_cmp_eq_u32 s9, 0")
    E("s_cbranch_scc1 L_polldone")
    E("s_sleep 32")
    E("s_branch L_poll")
    e.label("L_polldone")
    E(f"v_add_f32 v{hh}, v{hh}, v{hh+2}")
    E(f"v_add_f32 v{hh+1}, v{hh+4}, v{hh+6}")
    E(f"v_add_f32 v{hh+4}, v{hh+8}, v{hh+10}")
    E(f"v_add_f32 v{hh+5}, v{hh+12}, v{hh+14}")
    E(f"v_add_f32 v{hh}, v{hh}, v{hh+1}")
    E(f"v_add_f32 v{hh+4}, v{hh+4}, v{hh+5}")
    E(f"v_cvt_pk_bf16_f32 v{hh+1}, v{hh}, v{hh+4}")
    E(f"v_lshlrev_b32 v{hh}, 16, v{hh+1}")
    E(f"v_and_b32 v{hh+4}, 0xffff0000, v{hh+1}")
    E(f"v_mul_f32 v{hh+2}, {f32(-LOG2E)}, v{hh}")
    E(f"v_exp_f32 v{hh+2}, v{hh+2}")
    E(f"v_add_f32 v{hh+2}, 1.0, v{hh+2}")
    E(f"v_rcp_f32 v{hh+2}, v{hh+2}")
    E(f"v_mul_f32 v{hh}, v{hh}, v{hh+2}")
    E(f"v_cvt_pk_bf16_f32 v{hh}, v{hh}, v{hh}")
    E(f"v_and_b32 v{hh}, 0xffff0000, v{hh}")
    E(f"v_mul_f32 v{hh}, v{hh}, v{hh+4}")
    E(f"v_cvt_pk_bf16_f32 v{hh}, v{hh}, v{hh}")
    E(f"v_mov_b32 v{hh+1}, 1")
    E(f"ds_write_b32 v{T+11}, v{hh} offset:{HS}")
    E(f"ds_write_b32 v{A_z}, v{hh+1} offset:{HSF}")
    full()
    e.label("L_nosvc1")
    e.vm = save
    lds_spin(HSF, 1, T + 9, [f"ds_read_b64 {vr(T+10,2)}, v{T+8} offset:{HS}"], sleep=16)
    e.wait("wd1_4")
    for k in range(2):
        mkB(k, T + 10 + k)
    for k in range(2):
        for cb in range(5):
            E(f"v_mfma_f32_16x16x32_bf16 {vr(DY+4*cb)}, {vr(WD+20*k+4*cb)}, {vr(BB+4*k)}, {vr(DY+4*cb) if k else '0'}")
    stamp(3)
    E("s_cmp_eq_u32 s15, 0")
    E("s_cbranch_scc0 L_nosvc2")
    save = list(e.vm)
    mW, lW, FJ = T + 14, T + 15, T + 13
    E(f"v_and_b32 v{T+9}, 3, v0")
    E(f"v_lshlrev_b32 v{T+8}, 3, v{T+9}")
    E(f"v_lshlrev_b32 v{T+9}, 2, v{T+9}")
    lds_spin(KCNT, 4, T + 12, [f"ds_read_b64 {vr(T+10,2)}, v{T+8} offset:{ST}"], sleep=16)
    E(f"v_max_f32_dpp v{mW}, v{T+10}, v{T+10} quad_perm:[1,0,3,2] row_mask:0xf bank_mask:0xf")
    E(f"v_max_f32_dpp v{mW}, v{mW}, v{mW} quad_perm:[2,3,0,1] row_mask:0xf bank_mask:0xf")
    E(f"v_sub_f32 v{FJ}, v{T+10}, v{mW}")
    E(f"v_mul_f32 v{FJ}, s91, v{FJ}")
    E(f"v_exp_f32 v{FJ}, v{FJ}")
    E(f"v_mul_f32 v{lW}, v{FJ}, v{T+11}")
    E(f"v_add_f32_dpp v{lW}, v{lW}, v{lW} quad_perm:[1,0,3,2] row_mask:0xf bank_mask:0xf")
    E(f"v_add_f32_dpp v{lW}, v{lW}, v{lW} quad_perm:[2,3,0,1] row_mask:0xf bank_mask:0xf")
    MB = WD
    E(f"v_mov_b32 v{MB}, v{mW}")
    E(f"v_mov_b32 v{MB+1}, s90")
    E(f"v_mov_b32 v{MB+2}, v{lW}")
    E(f"v_mov_b32 v{MB+3}, s90")
    E("s_lshl_b32 s9, s2, 7")
    E(f"s_add_u32 s8, s9, {WS_MBOX}")
    set_exec(1, 0)
    E(f"buffer_store_dwordx4 {vr(MB)}, v{A_z}, {srd(sWS)}, s8 offen sc1")
    full()
    E(f"s_xor_b32 s8, s8, {32*128}")
    E("s_mov_b32 s9, 0x100000")
    e.label("L_mb")
    E("s_sleep %d" % P.get("mbsleep", 64))
    E(f"buffer_load_dwordx4 {vr(MB+4)}, v{A_z}, {srd(sWS)}, s8 offen sc1")
    E("s_waitcnt vmcnt(0)")
    E(f"v_readfirstlane_b32 s10, v{MB+5}")
    E(f"v_readfirstlane_b32 s14, v{MB+7}")
    E("s_sub_u32 s9, s9, 1")
    E("s_cmp_eq_u32 s9, 0")
    E("s_cbranch_scc1 L_mbdone")
    E("s_cmp_eq_u32 s10, s90")
    E("s_cbranch_scc0 L_mb")
    E("s_cmp_eq_u32 s14, s90")
    E("s_cbranch_scc0 L_mb")
    e.label("L_mbdone")
    m2, l2 = MB + 4, MB + 6
    E(f"v_max_f32 v{T+6}, v{mW}, v{m2}")
    E(f"v_sub_f32 v{T+7}, v{mW}, v{T+6}")
    E(f"v_sub_f32 v{T+8}, v{m2}, v{T+6}")
    E(f"v_mul_f32 v{T+7}, s91, v{T+7}")
    E(f"v_mul_f32 v{T+8}, s91, v{T+8}")
    E(f"v_exp_f32 v{T+7}, v{T+7}")
    E(f"v_exp_f32 v{T+8}, v{T+8}")
    E(f"v_mul_f32 v{T+6}, v{lW}, v{T+7}")
    E(f"v_fmac_f32 v{T+6}, v{l2}, v{T+8}")
    E(f"v_rcp_f32 v{T+6}, v{T+6}")
    E(f"v_mul_f32 v{T+7}, v{T+7}, v{FJ}")
    E(f"v_mul_f32 v{T+6}, v{T+6}, v{T+7}")
    E(f"v_mov_b32 v{T+7}, 1")
    E(f"ds_write_b32 v{T+9}, v{T+6} offset:{WJ}")
    E(f"ds_write_b32 v{A_z}, v{T+7} offset:{WFLAG}")
    e.label("L_nosvc2")
    e.vm = save
    WR = T + 12
    lds_spin(WFLAG, 1, T + 9, [f"ds_read_b128 {vr(WR)}, v{A_z} offset:{WJ}"], sleep=16)
    E("s_lshl_b32 s9, s15, 7")
    E(f"v_lshl_add_u32 v{A_o}, v{T+2}, 5, s9")
    mH, mL = T + 10, T + 11
    E(f"v_cmp_lt_u32 vcc, 7, v{T+1}")
    E(f"v_mov_b32 v{T+9}, 0xffff0000")
    E(f"v_cndmask_b32 v{mH}, v{T+9}, -1, vcc")
    E(f"v_cndmask_b32 v{mL}, 0, v{T+9}, vcc")
    E("s_mul_i32 s9, s15, 5120")
    E(f"v_lshl_add_u32 v{T+8}, v{T}, 4, s9")
    stamp(9)
    E("s_waitcnt vmcnt(0)")
    E("s_barrier")
    O = WD
    for k in range(2):
        for s in range(4):
            E(f"ds_read_b128 {vr(O+16*k+4*s)}, v{A_o} offset:{OP+s*512+k*16}")
    stamp(8)

    def prep(t):
        k, r = t >> 2, t & 3
        o = O + 16 * k + r
        E(f"v_mul_f32 v{o}, v{o}, v{WR}")
        for s in range(1, 4):
            E(f"v_fmac_f32 v{o}, v{o+4*s}, v{WR+s}")
        E(f"v_and_b32 v{o+4}, v{o}, v{mH}")
        E(f"v_and_b32 v{o+8}, v{o}, v{mL}")
        E(f"v_sub_f32 v{o}, v{o+4}, v{o+8}")
        E(f"v_cvt_pk_bf16_f32 v{o}, v{o}, v{o}")
        mkB(t & 1, o)

    E("s_waitcnt lgkmcnt(4)")
    prep(0)
    for t in range(8):
        for cb in range(5):
            E(f"v_mfma_f32_16x16x32_bf16 {vr(DY+4*cb)}, {vr(WO+20*t+4*cb)}, {vr(BB+4*(t&1))}, {vr(DY+4*cb)}")
            if cb == 0 and t + 1 < 8:
                if t + 1 == 4:
                    E("s_waitcnt lgkmcnt(0)")
                prep(t + 1)
    for cb in range(5):
        E(f"ds_write_b128 v{T+8}, {vr(DY+4*cb)} offset:{YP+cb*1024}")
    E("s_waitcnt lgkmcnt(0)")
    e.label("L_T3")
    e.vm = []
    E(f"v_add_u32 v{vB}, 128, v{A_ypr}")
    E("s_barrier")
    E("s_cmp_lt_u32 s3, 3")
    E("s_cbranch_scc1 L_end")
    for hl in range(2):
        for i in range(4):
            E(f"ds_read2st64_b32 {vr(T+8*hl+2*i,2)}, v{A_ypr if hl == 0 else vB} offset0:{20*i} offset1:{20*i+2}")
    stamp(10)
    E("s_waitcnt lgkmcnt(0)")
    for i in range(8):
        E(f"v_add_f32 v{T+i}, v{T+i}, v{T+8+i}")
    for i in range(4):
        E(f"v_add_f32 v{T+i}, v{T+i}, v{T+4+i}")
    for c2 in range(2):
        E(f"v_add_f32 v{T+c2}, v{T+c2}, v{T+2+c2}")
    for c2 in range(2):
        E(f"buffer_atomic_add_f32 v{T+c2}, v{A_acc}, {srd(sWS)}, 0 offen offset:{c2*256}")
    E("s_lshl_b32 s9, s5, 14")
    E(f"s_add_u32 s8, s9, {WS_ACC + 10240}")
    E(f"v_mov_b32 v{T+4}, 1")
    E("s_waitcnt vmcnt(0)")
    E("s_barrier")
    E(f"s_cmp_eq_u32 s3, {FIN}")
    E("s_cbranch_scc0 L_end")
    stamp(5)
    set_exec(1, 0)
    E(f"buffer_atomic_add v{T+4}, v{A_z}, {srd(sWS)}, s8 offen sc0")
    full()
    E("s_waitcnt vmcnt(0)")
    E(f"v_readfirstlane_b32 s9, v{T+4}")
    stamp(6)
    E("s_cmp_eq_u32 s9, 63")
    E("s_cbranch_scc0 L_end")
    AC = 64
    E("s_cmp_eq_u32 s5, 0")
    E("s_cbranch_scc0 L_noep")
    E(f"s_mov_b32 s8, {WS_EPOCH}")
    set_exec(1, 0)
    E(f"buffer_store_dword v{vTAG}, v{A_z}, {srd(sWS)}, s8 offen")
    full()
    e.label("L_noep")
    for rep in range(4):
        if rep:
            E(f"s_mov_b32 s8, {rep*2560}")
        for k in range(3):
            E(f"buffer_load_dwordx4 {vr(AC+16*k+4*rep)}, v{vAR}, {srd(sWS)}, {'s8' if rep else '0'} offen offset:{k*1024} sc1")
    E("s_waitcnt vmcnt(0)")
    for k in range(3):
        a = AC + 16 * k
        for r in range(4):
            E(f"v_add_f32 v{a+r}, v{a+r}, v{a+4+r}")
            E(f"v_add_f32 v{a+8+r}, v{a+8+r}, v{a+12+r}")
        E(f"v_lshlrev_b32 v{a+4}, 16, v{XR+2*k}")
        E(f"v_and_b32 v{a+5}, 0xffff0000, v{XR+2*k}")
        E(f"v_lshlrev_b32 v{a+6}, 16, v{XR+2*k+1}")
        E(f"v_and_b32 v{a+7}, 0xffff0000, v{XR+2*k+1}")
        for r in range(4):
            E(f"v_add_f32 v{a+r}, v{a+r}, v{a+8+r}")
        for r in range(4):
            E(f"v_add_f32 v{a+r}, v{a+r}, v{a+4+r}")
        E(f"v_cvt_pk_bf16_f32 v{a}, v{a}, v{a+1}")
        E(f"v_cvt_pk_bf16_f32 v{a+1}, v{a+2}, v{a+3}")
        if k == 2:
            set_exec(0xffffffff, 0)
        E(f"buffer_store_dwordx2 {vr(a,2)}, v{vXO}, {srd(sOUT)}, 0 offen offset:{k*512}")
    if stamps:
        full()
        stamp(7)
    e.label("L_end")
    E("s_endpgm")
    e.label("L_codeend")

    out = HEADER
    out += f"; @launch grid=(256,1,1) block=(512,1,1) lds={LDS_BYTES}\n"
    out += '.amdgcn_target "amdgcn-amd-amdhsa--gfx950"\n.text\n'
    out += f".globl {KN}\n.p2align 8\n.type {KN},@function\n{KN}:\n"
    out += e.text()
    out += f""".section .rodata,"a"
.p2align 6
.amdhsa_kernel {KN}
  .amdhsa_next_free_vgpr 256
  .amdhsa_next_free_sgpr 102
  .amdhsa_accum_offset 256
  .amdhsa_group_segment_fixed_size 0
  .amdhsa_kernarg_size 96
  .amdhsa_user_sgpr_count 2
  .amdhsa_user_sgpr_kernarg_segment_ptr 1
  .amdhsa_system_sgpr_workgroup_id_x 1
  .amdhsa_float_denorm_mode_32 3
.end_amdhsa_kernel
"""
    return out


if __name__ == "__main__":
    ap = argparse.ArgumentParser()
    ap.add_argument("-o", default="k.s")
    ap.add_argument("--stamps", type=int, default=0)
    ap.add_argument("-P", default="")
    a = ap.parse_args()
    P = {k: int(v) for k, v in (x.split("=") for x in a.P.split(",") if x)}
    open(a.o, "w").write(gen(P, a.stamps))
```

```python
import struct, sys, argparse
from emit import Emitter

KN = "parallel_sum__mha_block_cached__swiglu_ffn__decode_kernel"
HEADER = open("parallel_sum__mha_block_cached__swiglu_ffn__decode.s.ref").read().split("; Override launch")[0]
LOG2E = 1.4426950408889634


def f32(x):
    return "0x%08x" % struct.unpack("<I", struct.pack("<f", x))[0]


def bitrev4(t):
    return int(f"{t:04b}"[::-1], 2)


XS = 0
QP = 10240
QF = QP + 8192
FP = QF + 256
ST = FP + 8192
WJ = ST + 32
TAGL = ST + 48
ZZ = ST + 64
HS = ZZ
FL = ZZ + 512
XCNT, HCNT, QFLAG, KCNT, HSF, WFLAG, QCNT, GCNT = FL, FL + 4, FL + 8, FL + 12, FL + 16, FL + 20, FL + 24, FL + 28
OP = ZZ + 1024
YP = OP + 2048
QS = YP
LDS_BYTES = YP + 20480
assert all(x % 16 == 0 for x in (QP, QF, FP, ST, WJ, ZZ, OP, YP))

WS_FP = 0
WS_ACC = 512 * 1024
WS_MBOX = WS_ACC + 65536
WS_EPOCH = WS_MBOX + 256 * 128
WS_DBG = 1 << 20
WS_Q = 2 << 20
ZWG = 252

POL = ["nt", "", "sc1", "sc0 sc1 nt", "sc0 nt", "sc1 nt", "sc0", "sc0 sc1"]
FIN = 4

sK, sV, sWQ, sWO, sX, sF, sWD, sOUT, sDBG, sWS, sPC = 40, 44, 48, 52, 56, 60, 64, 68, 72, 76, 80


def srd(n):
    return f"s[{n}:{n+3}]"


def vr(a, n=4):
    return f"v[{a}:{a+n-1}]"


def gen(P=None, stamps=0):
    P = dict(P or {})
    e = Emitter()
    E = e
    M = 2
    vA, vB = 6, 7
    A_z, A_ypr, A_acc, A_o = 8, 9, 10, 11
    BB = 12
    T = 20
    W = P.get("W", 6)
    wfl = POL[P.get("wpol", 0)]
    lab = [0]

    def newlab(p):
        lab[0] += 1
        return f"L_{p}{lab[0]}"

    def stamp(i):
        if not stamps:
            return
        save = list(e.vm)
        E("s_memrealtime s[96:97]")
        E("s_waitcnt lgkmcnt(0)")
        E(f"v_mov_b32 v{vA}, s96")
        E(f"s_mov_b32 s99, {WS_DBG + i*4}")
        E(f"v_mov_b32 v{vB}, s98")
        E(f"buffer_store_dword v{vA}, v{vB}, {srd(sWS)}, s99 offen")
        e.vm = save

    def reduce64(v, op, sdst, mid=None):
        for r in (8, 4, 2, 1):
            E(f"v_{op}_f32_dpp v{v}, v{v}, v{v} row_ror:{r} row_mask:0xf bank_mask:0xf")
        if mid:
            mid()
        E(f"v_{op}_f32_dpp v{v}, v{v}, v{v} row_bcast:15 row_mask:0xa bank_mask:0xf")
        E(f"v_{op}_f32_dpp v{v}, v{v}, v{v} row_bcast:31 row_mask:0xc bank_mask:0xf")
        E(f"v_readlane_b32 s{sdst}, v{v}, 63")

    def set_exec(lo, hi):
        if lo == hi == 0xffffffff:
            E("s_mov_b64 exec, -1")
        elif hi == 0 and lo <= 64:
            E(f"s_mov_b64 exec, {lo}")
        else:
            E(f"s_mov_b32 exec_lo, 0x{lo:08x}")
            E(f"s_mov_b32 exec_hi, 0x{hi:08x}")

    def full():
        set_exec(0xffffffff, 0xffffffff)

    def mk_srd(n, ptr, nbytes):
        E(f"s_mov_b64 s[{n}:{n+1}], s[{ptr}:{ptr+1}]")
        if nbytes is not None:
            E(f"s_mov_b32 s{n+2}, 0x{nbytes:x}")
        E(f"s_mov_b32 s{n+3}, 0x20000")

    def mkB(setidx, src, dpp=None):
        for r in range(4):
            if dpp is None:
                E(f"v_and_b32 v{BB+4*setidx+r}, v{src}, v{M+r}")
            else:
                E(f"v_and_b32_dpp v{BB+4*setidx+r}, v{src}, v{M+r} row_newbcast:{dpp} row_mask:0xf bank_mask:0xf")

    def lds_spin(off, target, tmp, reads=(), sleep=2):
        L, D = newlab("sp"), newlab("spd")
        E("s_mov_b32 s9, 0x400000")
        e.label(L)
        E(f"ds_read_b32 v{tmp}, v{A_z} offset:{off}")
        for r in reads:
            E(r)
        E("s_waitcnt lgkmcnt(0)")
        E(f"v_readfirstlane_b32 s10, v{tmp}")
        E(f"s_cmp_ge_u32 s10, {target}")
        E(f"s_cbranch_scc1 {D}")
        E("s_sub_u32 s9, s9, 1")
        E("s_cmp_eq_u32 s9, 0")
        E(f"s_cbranch_scc1 {D}")
        E(f"s_sleep {sleep}")
        E(f"s_branch {L}")
        e.label(D)

    def lds_arrive(off, tmp, sdst):
        E(f"v_mov_b32 v{tmp}, 1")
        set_exec(1, 0)
        E(f"ds_add_rtn_u32 v{tmp}, v{A_z}, v{tmp} offset:{off}")
        full()
        E("s_waitcnt lgkmcnt(0)")
        E(f"v_readfirstlane_b32 s{sdst}, v{tmp}")

    def masks(t):
        E(f"v_and_b32 v{t}, 1, v0")
        E(f"v_cmp_eq_u32 vcc, 1, v{t}")
        E(f"v_mov_b32 v{t+1}, 0xffff")
        E(f"v_mov_b32 v{t+2}, 0xffff0000")
        E(f"v_cndmask_b32 v{t}, v{t+1}, v{t+2}, vcc")
        E(f"v_bfe_u32 v{t+1}, v0, 1, 2")
        for r in range(4):
            E(f"v_cmp_eq_u32 vcc, {r}, v{t+1}")
            E(f"v_cndmask_b32 v{M+r}, 0, v{t}, vcc")

    def fin_addrs(x, y):
        E(f"v_bfe_u32 v{x}, v0, 5, 1")
        E(f"v_lshlrev_b32 v{x}, 8, v{x}")
        E(f"v_and_b32 v{y}, 7, v0")
        E(f"v_lshl_add_u32 v{x}, v{y}, 4, v{x}")
        E(f"v_bfe_u32 v{y}, v0, 3, 2")
        E(f"v_lshl_add_u32 v{x}, v{y}, 2, v{x}")
        E("s_lshl_b32 s9, s3, 10")
        E(f"s_add_u32 s9, s9, {YP - 3*1024}")
        E(f"v_add_u32 v{A_ypr}, s9, v{x}")
        E("s_and_b32 s9, s4, 3")
        E("s_mul_i32 s9, s9, 2560")
        E("s_lshl_b32 s10, s5, 14")
        E("s_add_u32 s9, s9, s10")
        E("s_lshl_b32 s10, s3, 9")
        E("s_add_u32 s9, s9, s10")
        E(f"s_add_u32 s9, s9, {WS_ACC - 3*512}")
        E(f"v_and_b32 v{x}, 63, v0")
        E(f"v_lshl_add_u32 v{A_acc}, v{x}, 2, s9")

    E("s_cmp_ge_u32 s2, 256")
    E("s_cbranch_scc1 L_end")
    E("s_load_dwordx16 s[16:31], s[0:1], 0")
    E("s_load_dwordx8 s[32:39], s[0:1], 64")
    E("v_lshrrev_b32 v1, 6, v0")
    E(f"v_mov_b32 v{A_z}, 0")
    E("v_readfirstlane_b32 s3, v1")
    E(f"v_and_b32 v{T}, 63, v0")
    E("s_and_b32 s4, s2, 31")
    E("s_lshr_b32 s5, s2, 6")
    E("s_bfe_u32 s6, s2, 0x10005")
    E("s_lshl_b32 s7, s4, 1")
    E("s_add_u32 s7, s7, s6")
    E(f"s_mov_b32 s91, {f32(LOG2E)}")
    if stamps:
        E("s_lshl_b32 s98, s2, 4")
        E("s_add_u32 s98, s98, s3")
        E("s_lshl_b32 s98, s98, 6")
    E("s_and_b32 s15, s3, 3")
    E("s_cmp_lt_u32 s3, 4")
    E("s_cbranch_scc1 L_helper")
    hist0 = list(e.hist)

    vKV = 1
    Q = 36
    DO = 40
    S0 = 44
    XR = 52
    vXO, vAR, vTAG = 58, 59, 60
    SETS = [64 + 4 * i for i in range(P.get("NS", 48))]
    E("s_lshl_b32 s10, s5, 6")
    E("s_add_u32 s10, s10, s7")
    E("s_lshl_b32 s10, s10, 19")
    E("s_lshl_b32 s11, s15, 12")
    E("s_add_u32 s10, s10, s11")
    E(f"v_lshl_add_u32 v{vKV}, v{T}, 4, s10")
    E(f"s_mov_b32 s{sK+2}, 0x8000000")
    E(f"s_mov_b32 s{sK+3}, 0x20000")
    E("s_waitcnt lgkmcnt(0)")
    E(f"s_mov_b64 s[{sK}:{sK+1}], s[18:19]")
    free = list(SETS)
    where = {}
    st = {"i": 0, "so": None}

    def issue():
        n = st["i"]
        if n >= 256 or not free:
            return False
        st["i"] += 1
        if n >= W:
            e.wait(f"kv{n-W}")
        free.sort()
        r = free.pop(0)
        where[n] = r
        t = n & 127
        so = (t >> 2) * 16384
        if so and st["so"] != so:
            E(f"s_mov_b32 s8, {so}")
            st["so"] = so
        E(f"buffer_load_dwordx4 {vr(r)}, v{vKV}, {srd(sK if n < 128 else sV)}, {'s8' if so else '0'} offen offset:{(t&3)*1024} {POL[P.get('kpol', 0) if n < 128 else P.get('vpol', 0)]}", tag=f"kv{n}")
        return True

    for _ in range(W):
        issue()
    mk_srd(sV, 20, 0x8000000)
    mk_srd(sWS, 38, 0x20000000)
    mk_srd(sOUT, 34, 5120)
    mk_srd(sX, 16, 5120)
    E("s_mov_b32 s86, 0xcccccccc")
    E("s_mov_b32 s87, 0xcccccccc")
    E("s_mov_b32 s88, 0xaaaaaaaa")
    E("s_mov_b32 s89, 0xaaaaaaaa")
    masks(T + 1)
    fin_addrs(T + 1, T + 2)
    E(f"v_and_b32 v{T+1}, 7, v0")
    E(f"v_bfe_u32 v{T+2}, v0, 4, 2")
    E(f"v_lshl_add_u32 v{T+1}, v{T+2}, 3, v{T+1}")
    E("s_lshl_b32 s9, s15, 9")
    E(f"v_lshl_add_u32 v{A_o}, v{T+1}, 4, s9")
    E("s_mul_i32 s9, s5, 1280")
    E(f"v_lshl_add_u32 v{vXO}, v{T}, 3, s9")
    E("s_lshl_b32 s9, s5, 14")
    E(f"s_add_u32 s9, s9, {WS_ACC}")
    E(f"v_lshl_add_u32 v{vAR}, v{T}, 4, s9")
    E(f"v_and_b32 v{T+8}, 15, v0")
    E(f"v_lshlrev_b32 v{T+8}, 4, v{T+8}")
    stamp(0)
    E("s_barrier")
    while issue():
        pass
    stamp(1)
    lds_spin(QFLAG, 1, T + 9, [f"ds_read_b128 {vr(Q)}, v{T+8} offset:{QF}", f"ds_read_b32 v{vTAG}, v{A_z} offset:{TAGL}"], sleep=1)
    stamp(2)

    def k_consume(n):
        r = where[n]
        a = T + (n & 1)
        e.wait(f"kv{n}")
        E(f"v_dot2_f32_bf16 v{a}, v{r}, v{Q}, 0")
        for i in range(1, 4):
            E(f"v_dot2_f32_bf16 v{a}, v{r+i}, v{Q+i}, v{a}")
        free.append(r)

    def k_post(n):
        if n & 1:
            b = T + 2 + ((n >> 1) & 1)
            E(f"v_add_f32_dpp v{b}, v{T}, v{T} row_shl:8 row_mask:0xf bank_mask:0x3")
            E(f"v_add_f32_dpp v{b}, v{T+1}, v{T+1} row_shr:8 row_mask:0xf bank_mask:0xc")
        if (n & 3) == 3:
            d = T + 4 + ((n >> 2) & 1)
            E(f"v_add_f32_dpp v{d}, v{T+2}, v{T+2} row_shl:4 row_mask:0xf bank_mask:0x5")
            E(f"v_add_f32_dpp v{d}, v{T+3}, v{T+3} row_shr:4 row_mask:0xf bank_mask:0xa")
            E(f"v_add_f32_dpp v{d}, v{d}, v{d} quad_perm:[2,3,0,1] row_mask:0xf bank_mask:0xf")
        if (n & 7) == 7:
            ee = T + 6 + ((n >> 3) & 1)
            E(f"v_cndmask_b32 v{ee}, v{T+4}, v{T+5}, s[86:87]")
            E(f"v_add_f32_dpp v{ee}, v{ee}, v{ee} quad_perm:[1,0,3,2] row_mask:0xf bank_mask:0xf")
        if (n & 15) == 15:
            E(f"v_cndmask_b32 v{S0 + (n >> 4)}, v{T+6}, v{T+7}, s[88:89]")

    catch = P.get("catch", 3)
    first = P.get("first", W)
    cnt = 0
    for n in range(128):
        k_consume(n)
        cnt += 1
        lag = st["i"] - (n + 1)
        if n < first or lag < W or cnt >= catch:
            issue()
            cnt = 0
        k_post(n)
    for i in range(0, 8, 2):
        E(f"v_cvt_pk_bf16_f32 v{T+i}, v{S0+i}, v{S0+i+1}")
    for i in range(0, 8, 2):
        E(f"v_lshlrev_b32 v{S0+i}, 16, v{T+i}")
        E(f"v_and_b32 v{S0+i+1}, 0xffff0000, v{T+i}")
    for i in range(8):
        E(f"v_mul_f32 v{S0+i}, {f32(128 ** -0.5)}, v{S0+i}")
    for i in range(0, 8, 2):
        E(f"v_cvt_pk_bf16_f32 v{T+i}, v{S0+i}, v{S0+i+1}")
    for i in range(0, 8, 2):
        E(f"v_lshlrev_b32 v{S0+i}, 16, v{T+i}")
        E(f"v_and_b32 v{S0+i+1}, 0xffff0000, v{T+i}")
    E(f"v_max3_f32 v{T}, v{S0}, v{S0+1}, v{S0+2}")
    E(f"v_max3_f32 v{T+1}, v{S0+3}, v{S0+4}, v{S0+5}")
    E(f"v_max3_f32 v{T}, v{T}, v{S0+6}, v{S0+7}")
    E(f"v_max_f32 v{T}, v{T}, v{T+1}")
    reduce64(T, "max", 12, mid=issue)
    for i in range(8):
        E(f"v_subrev_f32 v{S0+i}, s12, v{S0+i}")
    for i in range(8):
        E(f"v_mul_f32 v{S0+i}, s91, v{S0+i}")
    for i in range(8):
        E(f"v_exp_f32 v{S0+i}, v{S0+i}")
    E(f"v_add_f32 v{T}, v{S0}, v{S0+1}")
    E(f"v_add_f32 v{T+1}, v{S0+2}, v{S0+3}")
    E(f"v_add_f32 v{T+2}, v{S0+4}, v{S0+5}")
    E(f"v_add_f32 v{T+3}, v{S0+6}, v{S0+7}")
    E(f"v_add_f32 v{T}, v{T}, v{T+1}")
    E(f"v_add_f32 v{T+2}, v{T+2}, v{T+3}")
    for i in range(8):
        E(f"v_cvt_pk_bf16_f32 v{S0+i}, v{S0+i}, v{S0+i}")
    E(f"v_add_f32 v{T}, v{T}, v{T+2}")
    reduce64(T, "add", 13, mid=issue)
    E(f"v_mov_b32 v{T+2}, s12")
    E(f"v_mov_b32 v{T+3}, s13")
    E("s_lshl_b32 s9, s15, 3")
    E(f"v_mov_b32 v{T+5}, s9")
    E(f"v_mov_b32 v{T+6}, 1")
    set_exec(1, 0)
    E(f"ds_write_b64 v{T+5}, {vr(T+2,2)} offset:{ST}")
    E(f"ds_add_u32 v{A_z}, v{T+6} offset:{KCNT}")
    full()
    stamp(3)
    mkB(0, S0, dpp=bitrev4(0))
    for n in range(128, 256):
        t = n - 128
        if t + 1 < 128:
            mkB((t + 1) & 1, S0 + ((t + 1) >> 4), dpp=bitrev4((t + 1) & 15))
        e.wait(f"kv{n}")
        E(f"v_mfma_f32_16x16x32_bf16 {vr(DO)}, {vr(where[n])}, {vr(BB+4*(t&1))}, {vr(DO) if t else '0'}")
        free.append(where[n])
        if st["i"] - (n + 1) < W:
            issue()
        if t == 100:
            for k in range(3):
                E(f"buffer_load_dwordx2 {vr(XR+2*k,2)}, v{vXO}, {srd(sX)}, 0 offen offset:{k*512}")
    stamp(4)
    set_exec(0x00ff00ff, 0x00ff00ff)
    E(f"ds_write_b128 v{A_o}, {vr(DO)} offset:{OP}")
    full()
    E("s_waitcnt lgkmcnt(0)")
    E("s_barrier")
    stamp(8)
    E("s_branch L_T3")

    e.hist = hist0
    e.vm = []
    e.label("L_helper")
    DY = 36
    WD = 56
    WO = 96
    WQ, FA, DQ, DF = WO, WO + 20, WO + 40, WO + 48
    E(f"v_lshlrev_b32 v{T+6}, 2, v0")
    E(f"ds_write_b32 v{T+6}, v{A_z} offset:{ZZ}")
    E(f"v_and_b32 v{T+1}, 15, v0")
    E(f"v_bfe_u32 v{T+2}, v0, 4, 2")
    E("s_mul_i32 s9, s15, 1280")
    E(f"v_lshl_add_u32 v{vA}, v{T}, 4, s9")
    E(f"v_lshl_add_u32 v{vB}, v{T}, 2, s9")
    E("s_lshr_b32 s11, s2, 5")
    E("s_mul_i32 s12, s11, 80")
    E("s_mul_i32 s13, s15, 20")
    E("s_add_u32 s12, s12, s13")
    E("s_lshl_b32 s10, s12, 13")
    E("s_lshl_b32 s13, s4, 8")
    E("s_add_u32 s10, s10, s13")
    E(f"v_mul_u32_u24 v{T+3}, {5*8192}, v{T+2}")
    E(f"v_lshl_add_u32 v{T+3}, v{T+1}, 4, v{T+3}")
    E(f"v_add_u32 v{T+3}, s10, v{T+3}")
    E("s_and_b32 s13, s2, 3")
    E("s_mul_i32 s13, s13, 160")
    E("s_mul_i32 s14, s15, 40")
    E("s_add_u32 s13, s13, s14")
    E("s_lshr_b32 s84, s2, 2")
    E("s_cmp_ge_u32 s84, 27")
    E("s_cselect_b32 s14, 27, 0")
    E("s_sub_u32 s14, s84, s14")
    E("s_lshl_b32 s14, s14, 7")
    E("s_mul_i32 s85, s13, 3456")
    E("s_add_u32 s14, s14, s85")
    E(f"v_lshrrev_b32 v{T+4}, 3, v{T}")
    E(f"v_mul_u32_u24 v{T+4}, 3456, v{T+4}")
    E(f"v_and_b32 v{T+5}, 7, v0")
    E(f"v_lshl_add_u32 v{T+4}, v{T+5}, 4, v{T+4}")
    E(f"v_add_u32 v{T+4}, s14, v{T+4}")
    E("s_cmp_lt_u32 s2, 216")
    E(f"s_cselect_b32 s{sF+2}, {0 if P.get('noffn') else 640*3456}, 0")
    E(f"s_mov_b32 s{sF+3}, 0x20000")
    E(f"s_mov_b32 s{sX+2}, 5120")
    E(f"s_mov_b32 s{sX+3}, 0x20000")
    E(f"s_mov_b32 s{sWQ+2}, {0 if P.get('nowq') else 640*8192}")
    E(f"s_mov_b32 s{sWQ+3}, 0x20000")
    E("s_waitcnt lgkmcnt(0)")
    E(f"s_mov_b64 s[{sX}:{sX+1}], s[16:17]")
    E(f"buffer_load_dwordx4 {vr(BB)}, v{vA}, {srd(sX)}, 0 offen", tag="x")
    E(f"buffer_load_dword v{BB+4}, v{vB}, {srd(sX)}, 0 offen offset:1024", tag="x")
    E(f"s_load_dword s90, s[38:39], {WS_EPOCH}")
    E(f"s_mov_b64 s[{sWQ}:{sWQ+1}], s[22:23]")
    for t in range(5):
        if t:
            E(f"s_mov_b32 s8, {t*8192}")
        E(f"buffer_load_dwordx4 {vr(WQ+4*t)}, v{T+3}, {srd(sWQ)}, {'s8' if t else '0'} offen {wfl}", tag=f"wq{t}")
    E("s_cmp_ge_u32 s84, 27")
    E(f"s_cselect_b64 s[{sF}:{sF+1}], s[30:31], s[28:29]")
    for u in range(5):
        if u:
            E(f"s_mov_b32 s8, {u*8*3456}")
        E(f"buffer_load_dwordx4 {vr(FA+4*u)}, v{T+4}, {srd(sF)}, {'s8' if u else '0'} offen {wfl}", tag=f"f{u}")
    if P.get("codepf", 1):
        E(f"s_getpc_b64 s[{sPC}:{sPC+1}]")
        e.label("L_pc")
        E(f"s_sub_u32 s{sPC}, s{sPC}, L_pc-{KN}")
        E(f"s_subb_u32 s{sPC+1}, s{sPC+1}, 0")
        E("s_cmp_lt_u32 s2, %d" % P.get("codewg", 16))
        E(f"s_cselect_b32 s{sPC+2}, L_codeend-{KN}, 0")
        E(f"s_mov_b32 s{sPC+3}, 0x20000")
        E(f"v_lshlrev_b32 v{T+7}, 7, v0")
        E(f"buffer_load_dword v{T+15}, v{T+7}, {srd(sPC)}, 0 offen")
    mk_srd(sWS, 38, 0x20000000)
    mk_srd(sOUT, 34, 5120)
    mk_srd(sWO, 24, 0 if P.get('nowo') else 4096 * 1280)
    mk_srd(sWD, 32, 0 if P.get('nowo') else 1728 * 1280)
    E("s_barrier")
    stamp(0)
    masks(T + 6)
    X = WD
    t0, t1, t2, t3, t4 = WD + 10, WD + 11, WD + 12, WD + 13, WD + 14
    E(f"v_lshlrev_b32 v{t3}, 5, v{T}")
    E("s_mul_i32 s9, s15, 2560")
    E(f"v_add_u32 v{t3}, s9, v{t3}")
    E(f"v_lshlrev_b32 v{t4}, 3, v{T}")
    E(f"v_add_u32 v{t4}, s9, v{t4}")
    E(f"s_mov_b32 s10, {f32(640.0)}")
    E(f"s_mov_b32 s14, {f32(1.0/640.0)}")
    E(f"v_bfe_u32 v{vA}, v0, 3, 1")
    E(f"v_mul_u32_u24 v{vA}, 2560, v{vA}")
    E(f"v_mul_u32_u24 v{vB}, 20, v{T+2}")
    E("s_lshl_b32 s9, s12, 2")
    E(f"v_add3_u32 v{vA}, v{vA}, v{vB}, s9")
    E(f"v_lshrrev_b32 v{vB}, 3, v{T}")
    E("s_lshl_b32 s9, s13, 2")
    E(f"v_lshl_add_u32 v{vB}, v{vB}, 2, s9")
    vBf = T + 14
    E(f"v_mov_b32 v{vBf}, v{vB}")
    e.wait("x")
    for i in range(5):
        E(f"v_lshlrev_b32 v{X+2*i}, 16, v{BB+i}")
        E(f"v_and_b32 v{X+2*i+1}, 0xffff0000, v{BB+i}")
    E(f"v_add_f32 v{t0}, v{X}, v{X+1}")
    E(f"v_add_f32 v{t1}, v{X+2}, v{X+3}")
    for i in range(4, 10, 2):
        E(f"v_add_f32 v{t0}, v{t0}, v{X+i}")
        E(f"v_add_f32 v{t1}, v{t1}, v{X+i+1}")
    E(f"v_add_f32 v{t0}, v{t0}, v{t1}")
    reduce64(t0, "add", 9)

    def div640(dst, tmp):
        E(f"v_mov_b32 v{tmp}, s9")
        E(f"v_mul_f32 v{dst}, s14, v{tmp}")
        E(f"v_fma_f32 v{tmp}, -v{dst}, s10, v{tmp}")
        E(f"v_fma_f32 v{dst}, v{tmp}, s14, v{dst}")

    div640(t2, t1)
    E(f"v_sub_f32 v{BB}, v{X}, v{t2}")
    E(f"v_sub_f32 v{BB+1}, v{X+1}, v{t2}")
    E(f"v_mul_f32 v{t0}, v{BB}, v{BB}")
    E(f"v_mul_f32 v{t1}, v{BB+1}, v{BB+1}")
    for i in range(2, 10, 2):
        E(f"v_sub_f32 v{BB}, v{X+i}, v{t2}")
        E(f"v_sub_f32 v{BB+1}, v{X+i+1}, v{t2}")
        E(f"v_fmac_f32 v{t0}, v{BB}, v{BB}")
        E(f"v_fmac_f32 v{t1}, v{BB+1}, v{BB+1}")
    E(f"v_add_f32 v{t0}, v{t0}, v{t1}")
    reduce64(t0, "add", 9)
    div640(t0, t1)
    E(f"v_cvt_pk_bf16_f32 v{t1}, v{t2}, v{t0}")
    E(f"v_lshlrev_b32 v{t2}, 16, v{t1}")
    E(f"v_and_b32 v{t0}, 0xffff0000, v{t1}")
    E(f"v_add_f32 v{t0}, {f32(1e-5)}, v{t0}")
    E(f"v_cvt_pk_bf16_f32 v{t0}, v{t0}, v{t0}")
    E(f"v_and_b32 v{t0}, 0xffff0000, v{t0}")
    E(f"v_sqrt_f32 v{t0}, v{t0}")
    E(f"v_cvt_pk_bf16_f32 v{t0}, v{t0}, v{t0}")
    E(f"v_and_b32 v{t0}, 0xffff0000, v{t0}")
    E(f"v_rcp_f32 v{t0}, v{t0}")
    for i in range(0, 10, 2):
        E(f"v_sub_f32 v{X+i}, v{X+i}, v{t2}")
        E(f"v_sub_f32 v{X+i+1}, v{X+i+1}, v{t2}")
        E(f"v_cvt_pk_bf16_f32 v{t1}, v{X+i}, v{X+i+1}")
        E(f"v_lshlrev_b32 v{X+i}, 16, v{t1}")
        E(f"v_and_b32 v{X+i+1}, 0xffff0000, v{t1}")
        E(f"v_mul_f32 v{X+i}, v{X+i}, v{t0}")
        E(f"v_mul_f32 v{X+i+1}, v{X+i+1}, v{t0}")
        E(f"v_cvt_pk_bf16_f32 v{X+i}, v{X+i}, v{X+i}")
        E(f"v_cvt_pk_bf16_f32 v{X+i+1}, v{X+i+1}, v{X+i+1}")
    E(f"v_mov_b32 v{t1}, 1")
    E(f"ds_write_b128 v{t3}, {vr(X)} offset:{XS}")
    E(f"ds_write_b128 v{t3}, {vr(X+4)} offset:{XS+16}")
    E(f"ds_write_b64 v{t4}, {vr(X+8,2)} offset:{XS+2048}")
    set_exec(1, 0)
    E(f"ds_add_u32 v{A_z}, v{t1} offset:{XCNT}")
    full()
    QV, FV = WO + 64, WO + 76
    E(f"v_lshl_add_u32 v{T+11}, v{T+2}, 3, v{T+5}")
    E(f"v_lshlrev_b32 v{T+11}, 4, v{T+11}")
    E(f"v_bfe_u32 v{T+10}, v0, 3, 1")
    E(f"v_lshl_add_u32 v{T+11}, v{T+10}, 9, v{T+11}")
    E("s_lshl_b32 s85, s15, 11")
    E(f"v_add_u32 v{T+11}, s85, v{T+11}")
    E(f"v_lshlrev_b32 v{T+10}, 4, v{T}")
    E(f"v_lshlrev_b32 v{T+12}, 3, v0")
    rd = [f"ds_read_b32 v{QV+5*p+t}, v{vA} offset:{XS+p*5120+4*t}" for p in range(2) for t in range(5)]
    lds_spin(XCNT, 4, T + 9, rd, sleep=1)
    E("s_mul_i32 s90, s90, 1664525")
    E("s_add_u32 s90, s90, 1013904223")
    seq = [(t, p) for t in range(5) for p in range(2)]
    mkB(0, QV)
    for i, (t, p) in enumerate(seq):
        if i + 1 < len(seq):
            mkB((i + 1) & 1, QV + 5 * seq[i + 1][1] + seq[i + 1][0])
        if p == 0:
            e.wait(f"wq{t}")
        E(f"v_mfma_f32_16x16x32_bf16 {vr(DQ+4*p)}, {vr(WQ+4*t)}, {vr(BB+4*(i&1))}, {vr(DQ+4*p) if t else '0'}")
    for b in range(2):
        for u in range(5):
            E(f"ds_read_b32 v{FV+5*b+u}, v{vB} offset:{XS+b*2560+u*32}")
    E(f"v_mov_b32 v{T+9}, 1")
    for p in range(2):
        E(f"ds_write_b128 v{T+11}, {vr(DQ+4*p)} offset:{QP+p*1024}")
    set_exec(1, 0)
    E(f"ds_add_u32 v{A_z}, v{T+9} offset:{QCNT}")
    full()
    E("s_lshl_b32 s8, s4, 2")
    E("s_add_u32 s8, s8, s15")
    E("s_lshl_b32 s8, s8, 3")
    E("s_add_u32 s8, s8, s11")
    E("s_lshl_b32 s8, s8, 10")
    E(f"s_add_u32 s8, s8, {WS_Q}")
    E("s_waitcnt lgkmcnt(0)")
    R = QV
    lds_spin(QCNT, 4, T + 9, [f"ds_read_b64 {vr(R+2*k,2)}, v{T+12} offset:{QP+k*2048}" for k in range(4)], sleep=1)
    E(f"v_add_f32 v{R}, v{R}, v{R+2}")
    E(f"v_add_f32 v{R+1}, v{R+1}, v{R+3}")
    E(f"v_add_f32 v{R+4}, v{R+4}, v{R+6}")
    E(f"v_add_f32 v{R+5}, v{R+5}, v{R+7}")
    E(f"v_add_f32 v{DQ}, v{R}, v{R+4}")
    E(f"v_add_f32 v{DQ+2}, v{R+1}, v{R+5}")
    E(f"v_mov_b32 v{DQ+1}, s90")
    E(f"v_mov_b32 v{DQ+3}, s90")
    if not P.get("noq"):
        E(f"buffer_store_dwordx4 {vr(DQ)}, v{T+10}, {srd(sWS)}, s8 offen sc1", tag="qst")
    stamp(4)
    for b in range(2, 4):
        for u in range(5):
            E(f"ds_read_b32 v{FV+5*b+u}, v{vBf} offset:{XS+b*2560+u*32}")
    seq = [(u, b) for u in range(5) for b in range(4)]
    E("s_waitcnt lgkmcnt(0)")
    mkB(0, FV)
    for i, (u, b) in enumerate(seq):
        if i + 1 < len(seq):
            mkB((i + 1) & 1, FV + 5 * seq[i + 1][1] + seq[i + 1][0])
        if b == 0:
            e.wait(f"f{u}")
        E(f"v_mfma_f32_16x16x32_bf16 {vr(DF+4*b)}, {vr(FA+4*u)}, {vr(BB+4*(i&1))}, {vr(DF+4*b) if u else '0'}")
    E(f"v_bfe_u32 v{vB}, v0, 4, 1")
    E(f"v_lshl_add_u32 v{vA}, v{vB}, 3, v{T+5}")
    E(f"v_lshlrev_b32 v{vA}, 4, v{vA}")
    E(f"v_bfe_u32 v{vB}, v0, 5, 1")
    E(f"v_lshl_add_u32 v{vA}, v{vB}, 10, v{vA}")
    E(f"v_add_u32 v{vA}, s85, v{vA}")
    set_exec(0x00ff00ff, 0xff00ff00)
    for b in range(4):
        E(f"ds_write_b128 v{vA}, {vr(DF+4*b)} offset:{FP+b*256}")
    full()
    wothr = P.get("wothr", 3)
    E(f"v_lshlrev_b32 v{T+3}, 4, v{T+1}")
    E(f"v_mul_u32_u24 v{T+4}, {2*1280}, v{T+2}")
    E(f"v_add_u32 v{T+3}, v{T+3}, v{T+4}")
    E("s_mul_i32 s9, s7, 27")
    E("s_lshl_b32 s10, s15, 3")
    E("s_add_u32 s9, s9, s10")
    E("s_mul_i32 s9, s9, 1280")
    E(f"v_add_u32 v{T+4}, s9, v{T+3}")
    E(f"v_lshl_add_u32 v{T+8}, v{T+2}, 1, s10")
    E(f"v_cmp_lt_u32 vcc, 26, v{T+8}")
    E(f"v_mov_b32 v{T+9}, 0x7fff0000")
    E(f"v_cndmask_b32 v{T+4}, v{T+4}, v{T+9}, vcc")
    E("s_lshl_b32 s9, s4, 7")
    E("s_lshl_b32 s10, s15, 5")
    E("s_add_u32 s9, s9, s10")
    E("s_mul_i32 s9, s9, 1280")
    E(f"v_add_u32 v{T+3}, s9, v{T+3}")
    tags = []

    def paced(text, tag):
        if wothr and len(tags) >= wothr:
            e.wait(tags[-wothr])
        E(text, tag=tag)
        tags.append(tag)

    wdl = [(k, cb) for k in range(2) for cb in range(5)]
    qdel = P.get("qdel", 10)

    def wd_load(k, cb):
        paced(f"buffer_load_dwordx4 {vr(WD+20*k+4*cb)}, v{T+4}, {srd(sWD)}, 0 offen offset:{k*1280+cb*256} {wfl}", f"wd{k}_{cb}")

    for k, cb in wdl[:qdel]:
        wd_load(k, cb)
    E("s_lshl_b32 s8, s4, 2")
    E("s_add_u32 s8, s8, s5")
    E("s_lshl_b32 s8, s8, 13")
    E("s_add_u32 s8, s8, s85")
    E(f"s_add_u32 s8, s8, {WS_Q}")
    G = WQ
    for k in range(0 if P.get("noq") else 2):
        E(f"buffer_load_dwordx4 {vr(G+4*k)}, v{T+10}, {srd(sWS)}, s8 offen offset:{k*1024} sc1")
    E("s_mov_b32 s9, %d" % (1 if P.get("noq") else 0x100000))
    e.label("L_qpoll")
    E("s_waitcnt vmcnt(0)")
    E(f"v_xor_b32 v{G+1}, s90, v{G+1}")
    E(f"v_xor_b32 v{G+3}, s90, v{G+3}")
    E(f"v_xor_b32 v{G+5}, s90, v{G+5}")
    E(f"v_xor_b32 v{G+7}, s90, v{G+7}")
    E(f"v_or3_b32 v{G+1}, v{G+1}, v{G+3}, v{G+5}")
    E(f"v_or_b32 v{G+1}, v{G+1}, v{G+7}")
    E(f"v_cmp_ne_u32 vcc, 0, v{G+1}")
    E("s_sub_u32 s9, s9, 1")
    E("s_nop 3")
    E("s_cbranch_vccz L_qok")
    E("s_cmp_eq_u32 s9, 0")
    E("s_cbranch_scc1 L_qok")
    E("s_sleep %d" % P.get("qsleep", 4))
    for k in range(2):
        E(f"buffer_load_dwordx4 {vr(G+4*k)}, v{T+10}, {srd(sWS)}, s8 offen offset:{k*1024} sc1")
    E("s_branch L_qpoll")
    e.label("L_qok")
    e.vm = []
    E(f"v_add_f32 v{G}, v{G}, v{G+4}")
    E(f"v_add_f32 v{G+1}, v{G+2}, v{G+6}")
    E(f"ds_write_b64 v{T+12}, {vr(G,2)} offset:{QS}")
    lds_arrive(GCNT, T + 9, 9)
    E("s_cmp_eq_u32 s9, 3")
    E("s_cbranch_scc0 L_notq")
    E(f"v_lshlrev_b32 v{T+13}, 3, v{T}")
    for k in range(4):
        E(f"ds_read_b64 {vr(G+2*k,2)}, v{T+13} offset:{QS+k*512}")
    F = WO + 32
    for k in range(8):
        E(f"ds_read_b128 {vr(F+4*k)}, v{T+10} offset:{FP+k*1024}")
    E(f"v_lshlrev_b32 v{vA}, 5, v{T+2}")
    E(f"v_and_b32 v{vB}, 1, v0")
    E(f"v_lshl_add_u32 v{vA}, v{vB}, 4, v{vA}")
    E(f"v_bfe_u32 v{vB}, v0, 1, 3")
    E(f"v_add_lshl_u32 v{vA}, v{vA}, v{vB}, 1")
    E(f"v_mov_b32 v{T+9}, 1")
    E("s_waitcnt lgkmcnt(8)")
    E(f"v_add_f32 v{G}, v{G}, v{G+2}")
    E(f"v_add_f32 v{G+1}, v{G+1}, v{G+3}")
    E(f"v_add_f32 v{G+4}, v{G+4}, v{G+6}")
    E(f"v_add_f32 v{G+5}, v{G+5}, v{G+7}")
    E(f"v_add_f32 v{G}, v{G}, v{G+4}")
    E(f"v_add_f32 v{G+1}, v{G+1}, v{G+5}")
    E(f"v_cvt_pk_bf16_f32 v{G}, v{G}, v{G+1}")
    E(f"ds_write_b16 v{vA}, v{G} offset:{QF}")
    E(f"ds_write_b16_d16_hi v{vA}, v{G} offset:{QF+16}")
    E(f"v_mov_b32 v{G+1}, s90")
    E(f"ds_write_b32 v{A_z}, v{G+1} offset:{TAGL}")
    E(f"ds_write_b32 v{A_z}, v{T+9} offset:{QFLAG}")
    E("s_waitcnt lgkmcnt(0)")
    E("s_cmp_lt_u32 s2, 216")
    E("s_cbranch_scc0 L_nofpub")
    for r in range(16):
        E(f"v_add_f32 v{F+r}, v{F+r}, v{F+16+r}")
    for r in range(8):
        E(f"v_add_f32 v{F+r}, v{F+r}, v{F+8+r}")
    for r in range(4):
        E(f"v_add_f32 v{F+8+2*r}, v{F+r}, v{F+4+r}")
        E(f"v_mov_b32 v{F+9+2*r}, s90")
    E(f"v_lshlrev_b32 v{T+13}, 5, v{T}")
    E("s_lshl_b32 s8, s2, 11")
    E(f"buffer_store_dwordx4 {vr(F+8)}, v{T+13}, {srd(sWS)}, s8 offen sc1")
    E(f"buffer_store_dwordx4 {vr(F+12)}, v{T+13}, {srd(sWS)}, s8 offen offset:16 sc1")
    E("s_branch L_notq")
    e.label("L_nofpub")
    E(f"s_cmp_ge_u32 s2, {ZWG}")
    E("s_cbranch_scc0 L_notq")
    for r in range(4):
        E(f"v_mov_b32 v{F+r}, 0")
    E(f"s_sub_u32 s8, s2, {ZWG}")
    E("s_lshl_b32 s8, s8, 14")
    E(f"s_add_u32 s8, s8, {WS_ACC}")
    for k in range(11):
        E(f"buffer_store_dwordx4 {vr(F)}, v{T+10}, {srd(sWS)}, s8 offen offset:{(k%4)*1024} sc1")
        if k % 4 == 3:
            E("s_add_u32 s8, s8, 4096")
    E(f"v_mov_b32 v{F+4}, s90")
    E("s_add_u32 s8, s8, 4096")
    E("s_waitcnt vmcnt(0)")
    set_exec(1, 0)
    E(f"buffer_store_dword v{F+4}, v{A_z}, {srd(sWS)}, s8 offen sc1")
    full()
    e.label("L_notq")
    E("s_nop 1")
    e.vm = []
    stamp(1)
    for k, cb in wdl[qdel:]:
        wd_load(k, cb)
    for t in range(8):
        so = ((t & 3) * 8 + (t >> 2)) * 1280
        if so:
            E(f"s_mov_b32 s8, {so}")
        for cb in range(5):
            paced(f"buffer_load_dwordx4 {vr(WO+20*t+4*cb)}, v{T+3}, {srd(sWO)}, {'s8' if so else '0'} offen offset:{cb*256} {wfl}", f"wo{t}_{cb}")
    fin_addrs(T + 6, T + 7)
    stamp(2)
    E(f"v_bfe_u32 v{T+9}, v0, 3, 1")
    E(f"v_lshlrev_b32 v{T+9}, 8, v{T+9}")
    E(f"v_lshl_add_u32 v{T+8}, v{T+8}, 2, v{T+9}")
    E("s_cmp_eq_u32 s15, 0")
    E("s_cbranch_scc0 L_nosvc1")
    save = list(e.vm)
    a0, a1, hh = T + 9, T + 10, DY
    E(f"v_lshlrev_b32 v{T+11}, 2, v{T}")
    E("s_mul_i32 s9, s7, 27")
    E(f"v_add_u32 v{a0}, s9, v{T}")
    E(f"v_lshrrev_b32 v{a1}, 6, v{a0}")
    E(f"v_lshlrev_b32 v{a1}, 13, v{a1}")
    E(f"v_bfe_u32 v{hh}, v{a0}, 5, 1")
    E(f"v_lshl_add_u32 v{a1}, v{hh}, 8, v{a1}")
    E(f"v_and_b32 v{hh}, 7, v{a0}")
    E(f"v_lshl_add_u32 v{a1}, v{hh}, 5, v{a1}")
    E(f"v_bfe_u32 v{hh}, v{a0}, 3, 2")
    E(f"v_lshl_add_u32 v{a1}, v{hh}, 3, v{a1}")
    E("s_lshl_b32 s8, s5, 9")
    E(f"v_add_u32 v{a1}, s8, v{a1}")
    E("s_lshl_b32 s14, s5, 14")
    E(f"s_add_u32 s14, s14, {WS_ACC + 12288}")
    E("s_mov_b32 s9, 0x100000")
    set_exec(0x07ffffff, 0)
    e.label("L_poll")
    for m in range(2):
        for s in range(4):
            if s % 2 == 0:
                E(f"s_mov_b32 s8, {m*27*8192 + s*2048}")
            E(f"buffer_load_dwordx2 {vr(hh+8*m+2*s,2)}, v{a1}, {srd(sWS)}, s8 offen offset:{(s%2)*2048} sc1")
    E(f"buffer_load_dword v{hh+16}, v{A_z}, {srd(sWS)}, s14 offen sc1")
    E("s_waitcnt vmcnt(0)")
    E(f"v_xor_b32 v{hh+16}, s90, v{hh+16}")
    for k in range(8):
        E(f"v_xor_b32 v{hh+2*k+1}, s90, v{hh+2*k+1}")
    for k in range(0, 8, 2):
        E(f"v_or3_b32 v{hh+16}, v{hh+16}, v{hh+2*k+1}, v{hh+2*k+3}")
    E(f"v_cmp_ne_u32 vcc, 0, v{hh+16}")
    E("s_sub_u32 s9, s9, 1")
    E("s_nop 3")
    E("s_cbranch_vccz L_polldone")
    E("s_cmp_eq_u32 s9, 0")
    E("s_cbranch_scc1 L_polldone")
    E("s_sleep 32")
    E("s_branch L_poll")
    e.label("L_polldone")
    E(f"v_add_f32 v{hh}, v{hh}, v{hh+2}")
    E(f"v_add_f32 v{hh+1}, v{hh+4}, v{hh+6}")
    E(f"v_add_f32 v{hh+4}, v{hh+8}, v{hh+10}")
    E(f"v_add_f32 v{hh+5}, v{hh+12}, v{hh+14}")
    E(f"v_add_f32 v{hh}, v{hh}, v{hh+1}")
    E(f"v_add_f32 v{hh+4}, v{hh+4}, v{hh+5}")
    E(f"v_cvt_pk_bf16_f32 v{hh+1}, v{hh}, v{hh+4}")
    E(f"v_lshlrev_b32 v{hh}, 16, v{hh+1}")
    E(f"v_and_b32 v{hh+4}, 0xffff0000, v{hh+1}")
    E(f"v_mul_f32 v{hh+2}, {f32(-LOG2E)}, v{hh}")
    E(f"v_exp_f32 v{hh+2}, v{hh+2}")
    E(f"v_add_f32 v{hh+2}, 1.0, v{hh+2}")
    E(f"v_rcp_f32 v{hh+2}, v{hh+2}")
    E(f"v_mul_f32 v{hh}, v{hh}, v{hh+2}")
    E(f"v_cvt_pk_bf16_f32 v{hh}, v{hh}, v{hh}")
    E(f"v_and_b32 v{hh}, 0xffff0000, v{hh}")
    E(f"v_mul_f32 v{hh}, v{hh}, v{hh+4}")
    E(f"v_cvt_pk_bf16_f32 v{hh}, v{hh}, v{hh}")
    E(f"v_mov_b32 v{hh+1}, 1")
    E(f"ds_write_b32 v{T+11}, v{hh} offset:{HS}")
    E(f"ds_write_b32 v{A_z}, v{hh+1} offset:{HSF}")
    full()
    e.label("L_nosvc1")
    e.vm = save
    lds_spin(HSF, 1, T + 9, [f"ds_read_b64 {vr(T+10,2)}, v{T+8} offset:{HS}"], sleep=16)
    e.wait("wd1_4")
    for k in range(2):
        mkB(k, T + 10 + k)
    for k in range(2):
        for cb in range(5):
            E(f"v_mfma_f32_16x16x32_bf16 {vr(DY+4*cb)}, {vr(WD+20*k+4*cb)}, {vr(BB+4*k)}, {vr(DY+4*cb) if k else '0'}")
    stamp(3)
    E("s_cmp_eq_u32 s15, 0")
    E("s_cbranch_scc0 L_nosvc2")
    save = list(e.vm)
    mW, lW, FJ = T + 14, T + 15, T + 13
    E(f"v_and_b32 v{T+9}, 3, v0")
    E(f"v_lshlrev_b32 v{T+8}, 3, v{T+9}")
    E(f"v_lshlrev_b32 v{T+9}, 2, v{T+9}")
    lds_spin(KCNT, 4, T + 12, [f"ds_read_b64 {vr(T+10,2)}, v{T+8} offset:{ST}"], sleep=16)
    E(f"v_max_f32_dpp v{mW}, v{T+10}, v{T+10} quad_perm:[1,0,3,2] row_mask:0xf bank_mask:0xf")
    E(f"v_max_f32_dpp v{mW}, v{mW}, v{mW} quad_perm:[2,3,0,1] row_mask:0xf bank_mask:0xf")
    E(f"v_sub_f32 v{FJ}, v{T+10}, v{mW}")
    E(f"v_mul_f32 v{FJ}, s91, v{FJ}")
    E(f"v_exp_f32 v{FJ}, v{FJ}")
    E(f"v_mul_f32 v{lW}, v{FJ}, v{T+11}")
    E(f"v_add_f32_dpp v{lW}, v{lW}, v{lW} quad_perm:[1,0,3,2] row_mask:0xf bank_mask:0xf")
    E(f"v_add_f32_dpp v{lW}, v{lW}, v{lW} quad_perm:[2,3,0,1] row_mask:0xf bank_mask:0xf")
    MB = WD
    E(f"v_mov_b32 v{MB}, v{mW}")
    E(f"v_mov_b32 v{MB+1}, s90")
    E(f"v_mov_b32 v{MB+2}, v{lW}")
    E(f"v_mov_b32 v{MB+3}, s90")
    E("s_lshl_b32 s9, s2, 7")
    E(f"s_add_u32 s8, s9, {WS_MBOX}")
    set_exec(1, 0)
    E(f"buffer_store_dwordx4 {vr(MB)}, v{A_z}, {srd(sWS)}, s8 offen sc1")
    full()
    E(f"s_xor_b32 s8, s8, {32*128}")
    E("s_mov_b32 s9, 0x100000")
    e.label("L_mb")
    E("s_sleep %d" % P.get("mbsleep", 64))
    E(f"buffer_load_dwordx4 {vr(MB+4)}, v{A_z}, {srd(sWS)}, s8 offen sc1")
    E("s_waitcnt vmcnt(0)")
    E(f"v_readfirstlane_b32 s10, v{MB+5}")
    E(f"v_readfirstlane_b32 s14, v{MB+7}")
    E("s_sub_u32 s9, s9, 1")
    E("s_cmp_eq_u32 s9, 0")
    E("s_cbranch_scc1 L_mbdone")
    E("s_cmp_eq_u32 s10, s90")
    E("s_cbranch_scc0 L_mb")
    E("s_cmp_eq_u32 s14, s90")
    E("s_cbranch_scc0 L_mb")
    e.label("L_mbdone")
    m2, l2 = MB + 4, MB + 6
    E(f"v_max_f32 v{T+6}, v{mW}, v{m2}")
    E(f"v_sub_f32 v{T+7}, v{mW}, v{T+6}")
    E(f"v_sub_f32 v{T+8}, v{m2}, v{T+6}")
    E(f"v_mul_f32 v{T+7}, s91, v{T+7}")
    E(f"v_mul_f32 v{T+8}, s91, v{T+8}")
    E(f"v_exp_f32 v{T+7}, v{T+7}")
    E(f"v_exp_f32 v{T+8}, v{T+8}")
    E(f"v_mul_f32 v{T+6}, v{lW}, v{T+7}")
    E(f"v_fmac_f32 v{T+6}, v{l2}, v{T+8}")
    E(f"v_rcp_f32 v{T+6}, v{T+6}")
    E(f"v_mul_f32 v{T+7}, v{T+7}, v{FJ}")
    E(f"v_mul_f32 v{T+6}, v{T+6}, v{T+7}")
    E(f"v_mov_b32 v{T+7}, 1")
    E(f"ds_write_b32 v{T+9}, v{T+6} offset:{WJ}")
    E(f"ds_write_b32 v{A_z}, v{T+7} offset:{WFLAG}")
    e.label("L_nosvc2")
    e.vm = save
    WR = T + 12
    lds_spin(WFLAG, 1, T + 9, [f"ds_read_b128 {vr(WR)}, v{A_z} offset:{WJ}"], sleep=16)
    E("s_lshl_b32 s9, s15, 7")
    E(f"v_lshl_add_u32 v{A_o}, v{T+2}, 5, s9")
    mH, mL = T + 10, T + 11
    E(f"v_cmp_lt_u32 vcc, 7, v{T+1}")
    E(f"v_mov_b32 v{T+9}, 0xffff0000")
    E(f"v_cndmask_b32 v{mH}, v{T+9}, -1, vcc")
    E(f"v_cndmask_b32 v{mL}, 0, v{T+9}, vcc")
    E("s_mul_i32 s9, s15, 5120")
    E(f"v_lshl_add_u32 v{T+8}, v{T}, 4, s9")
    stamp(9)
    E("s_waitcnt vmcnt(0)")
    E("s_barrier")
    O = WD
    for k in range(2):
        for s in range(4):
            E(f"ds_read_b128 {vr(O+16*k+4*s)}, v{A_o} offset:{OP+s*512+k*16}")
    stamp(8)

    def prep(t):
        k, r = t >> 2, t & 3
        o = O + 16 * k + r
        E(f"v_mul_f32 v{o}, v{o}, v{WR}")
        for s in range(1, 4):
            E(f"v_fmac_f32 v{o}, v{o+4*s}, v{WR+s}")
        E(f"v_and_b32 v{o+4}, v{o}, v{mH}")
        E(f"v_and_b32 v{o+8}, v{o}, v{mL}")
        E(f"v_sub_f32 v{o}, v{o+4}, v{o+8}")
        E(f"v_cvt_pk_bf16_f32 v{o}, v{o}, v{o}")
        mkB(t & 1, o)

    E("s_waitcnt lgkmcnt(4)")
    prep(0)
    for t in range(8):
        for cb in range(5):
            E(f"v_mfma_f32_16x16x32_bf16 {vr(DY+4*cb)}, {vr(WO+20*t+4*cb)}, {vr(BB+4*(t&1))}, {vr(DY+4*cb)}")
            if cb == 0 and t + 1 < 8:
                if t + 1 == 4:
                    E("s_waitcnt lgkmcnt(0)")
                prep(t + 1)
    for cb in range(5):
        E(f"ds_write_b128 v{T+8}, {vr(DY+4*cb)} offset:{YP+cb*1024}")
    E("s_waitcnt lgkmcnt(0)")
    e.label("L_T3")
    e.vm = []
    E(f"v_add_u32 v{vB}, 128, v{A_ypr}")
    E("s_barrier")
    E("s_cmp_lt_u32 s3, 3")
    E("s_cbranch_scc1 L_end")
    for hl in range(2):
        for i in range(4):
            E(f"ds_read2st64_b32 {vr(T+8*hl+2*i,2)}, v{A_ypr if hl == 0 else vB} offset0:{20*i} offset1:{20*i+2}")
    stamp(10)
    E("s_waitcnt lgkmcnt(0)")
    for i in range(8):
        E(f"v_add_f32 v{T+i}, v{T+i}, v{T+8+i}")
    for i in range(4):
        E(f"v_add_f32 v{T+i}, v{T+i}, v{T+4+i}")
    for c2 in range(2):
        E(f"v_add_f32 v{T+c2}, v{T+c2}, v{T+2+c2}")
    for c2 in range(2):
        E(f"buffer_atomic_add_f32 v{T+c2}, v{A_acc}, {srd(sWS)}, 0 offen offset:{c2*256}")
    E("s_lshl_b32 s9, s5, 14")
    E(f"s_add_u32 s8, s9, {WS_ACC + 10240}")
    E(f"v_mov_b32 v{T+4}, 1")
    E("s_waitcnt vmcnt(0)")
    E("s_barrier")
    E(f"s_cmp_eq_u32 s3, {FIN}")
    E("s_cbranch_scc0 L_end")
    stamp(5)
    set_exec(1, 0)
    E(f"buffer_atomic_add v{T+4}, v{A_z}, {srd(sWS)}, s8 offen sc0")
    full()
    E("s_waitcnt vmcnt(0)")
    E(f"v_readfirstlane_b32 s9, v{T+4}")
    stamp(6)
    E("s_cmp_eq_u32 s9, 63")
    E("s_cbranch_scc0 L_end")
    AC = 64
    E("s_cmp_eq_u32 s5, 0")
    E("s_cbranch_scc0 L_noep")
    E(f"s_mov_b32 s8, {WS_EPOCH}")
    set_exec(1, 0)
    E(f"buffer_store_dword v{vTAG}, v{A_z}, {srd(sWS)}, s8 offen")
    full()
    e.label("L_noep")
    for rep in range(4):
        if rep:
            E(f"s_mov_b32 s8, {rep*2560}")
        for k in range(3):
            E(f"buffer_load_dwordx4 {vr(AC+16*k+4*rep)}, v{vAR}, {srd(sWS)}, {'s8' if rep else '0'} offen offset:{k*1024} sc1")
    E("s_waitcnt vmcnt(0)")
    for k in range(3):
        a = AC + 16 * k
        for r in range(4):
            E(f"v_add_f32 v{a+r}, v{a+r}, v{a+4+r}")
            E(f"v_add_f32 v{a+8+r}, v{a+8+r}, v{a+12+r}")
        E(f"v_lshlrev_b32 v{a+4}, 16, v{XR+2*k}")
        E(f"v_and_b32 v{a+5}, 0xffff0000, v{XR+2*k}")
        E(f"v_lshlrev_b32 v{a+6}, 16, v{XR+2*k+1}")
        E(f"v_and_b32 v{a+7}, 0xffff0000, v{XR+2*k+1}")
        for r in range(4):
            E(f"v_add_f32 v{a+r}, v{a+r}, v{a+8+r}")
        for r in range(4):
            E(f"v_add_f32 v{a+r}, v{a+r}, v{a+4+r}")
        E(f"v_cvt_pk_bf16_f32 v{a}, v{a}, v{a+1}")
        E(f"v_cvt_pk_bf16_f32 v{a+1}, v{a+2}, v{a+3}")
        if k == 2:
            set_exec(0xffffffff, 0)
        E(f"buffer_store_dwordx2 {vr(a,2)}, v{vXO}, {srd(sOUT)}, 0 offen offset:{k*512}")
    if stamps:
        full()
        stamp(7)
    e.label("L_end")
    E("s_endpgm")
    e.label("L_codeend")

    out = HEADER
    out += f"; @launch grid=(256,1,1) block=(512,1,1) lds={LDS_BYTES}\n"
    out += '.amdgcn_target "amdgcn-amd-amdhsa--gfx950"\n.text\n'
    out += f".globl {KN}\n.p2align 8\n.type {KN},@function\n{KN}:\n"
    out += e.text()
    out += f""".section .rodata,"a"
.p2align 6
.amdhsa_kernel {KN}
  .amdhsa_next_free_vgpr 256
  .amdhsa_next_free_sgpr 102
  .amdhsa_accum_offset 256
  .amdhsa_group_segment_fixed_size 0
  .amdhsa_kernarg_size 96
  .amdhsa_user_sgpr_count 2
  .amdhsa_user_sgpr_kernarg_segment_ptr 1
  .amdhsa_system_sgpr_workgroup_id_x 1
  .amdhsa_float_denorm_mode_32 3
.end_amdhsa_kernel
"""
    return out


if __name__ == "__main__":
    ap = argparse.ArgumentParser()
    ap.add_argument("-o", default="k.s")
    ap.add_argument("--stamps", type=int, default=0)
    ap.add_argument("-P", default="")
    a = ap.parse_args()
    P = {k: int(v) for k, v in (x.split("=") for x in a.P.split(",") if x)}
    open(a.o, "w").write(gen(P, a.stamps))
```

```python
import struct, sys, argparse
from emit import Emitter

KN = "parallel_sum__mha_block_cached__swiglu_ffn__decode_kernel"
HEADER = open("parallel_sum__mha_block_cached__swiglu_ffn__decode.s.ref").read().split("; Override launch")[0]
LOG2E = 1.4426950408889634


def f32(x):
    return "0x%08x" % struct.unpack("<I", struct.pack("<f", x))[0]


def bitrev4(t):
    return int(f"{t:04b}"[::-1], 2)


XS = 0
QP = 10240
QF = QP + 8192
FP = QF + 256
ST = FP + 8192
WJ = ST + 32
TAGL = ST + 48
ZZ = ST + 64
HS = ZZ
FL = ZZ + 512
XCNT, HCNT, QFLAG, KCNT, HSF, WFLAG, QCNT, GCNT = FL, FL + 4, FL + 8, FL + 12, FL + 16, FL + 20, FL + 24, FL + 28
OP = ZZ + 2048
YP = OP + 2048
QS = YP
LDS_BYTES = YP + 20480
assert all(x % 16 == 0 for x in (QP, QF, FP, ST, WJ, ZZ, OP, YP))

WS_FP = 0
WS_ACC = 512 * 1024
WS_AFL = WS_ACC + 44 * 4096
WS_MBOX = WS_ACC + 48 * 4096
WS_EPOCH = WS_MBOX + 256 * 128
WS_DBG = 1 << 20
WS_Q = 2 << 20
ZWG = 252

POL = ["nt", "", "sc1", "sc0 sc1 nt", "sc0 nt", "sc1 nt", "sc0", "sc0 sc1"]
FIN = 4

sK, sV, sWQ, sWO, sX, sF, sWD, sOUT, sDBG, sWS, sPC = 40, 44, 48, 52, 56, 60, 64, 68, 72, 76, 80


def srd(n):
    return f"s[{n}:{n+3}]"


def vr(a, n=4):
    return f"v[{a}:{a+n-1}]"


def gen(P=None, stamps=0):
    P = dict(P or {})
    e = Emitter()
    E = e
    M = 2
    vA, vB = 6, 7
    A_z, A_o = 8, 11
    BB = 12
    T = 20
    W = P.get("W", 5)
    wfl = POL[P.get("wpol", 0)]
    lab = [0]

    def newlab(p):
        lab[0] += 1
        return f"L_{p}{lab[0]}"

    def stamp(i):
        if not stamps or (stamps == 2 and i in (8, 10)):
            return
        save = list(e.vm)
        E("s_memrealtime s[96:97]")
        E("s_waitcnt lgkmcnt(0)")
        E(f"v_mov_b32 v{vA}, s96")
        E(f"s_mov_b32 s99, {WS_DBG + i*4}")
        E(f"v_mov_b32 v{vB}, s98")
        E(f"buffer_store_dword v{vA}, v{vB}, {srd(sWS)}, s99 offen")
        e.vm = save

    def cstamp(k):
        if stamps == 2:
            E(f"s_memtime s[{20+2*k}:{21+2*k}]")

    def cflush(n):
        if stamps != 2:
            return
        E("s_waitcnt lgkmcnt(0)")
        for k in range(n):
            E(f"v_mov_b32 v{vA}, s{20+2*k}")
            E(f"s_mov_b32 s99, {WS_DBG + (10+k)*4}")
            E(f"v_mov_b32 v{vB}, s98")
            E(f"buffer_store_dword v{vA}, v{vB}, {srd(sWS)}, s99 offen")

    def reduce64(v, op, sdst, mid=None):
        for r in (8, 4, 2, 1):
            E(f"v_{op}_f32_dpp v{v}, v{v}, v{v} row_ror:{r} row_mask:0xf bank_mask:0xf")
        if mid:
            mid()
        E(f"v_{op}_f32_dpp v{v}, v{v}, v{v} row_bcast:15 row_mask:0xa bank_mask:0xf")
        E(f"v_{op}_f32_dpp v{v}, v{v}, v{v} row_bcast:31 row_mask:0xc bank_mask:0xf")
        E(f"v_readlane_b32 s{sdst}, v{v}, 63")

    def set_exec(lo, hi):
        if lo == hi == 0xffffffff:
            E("s_mov_b64 exec, -1")
        elif hi == 0 and lo <= 64:
            E(f"s_mov_b64 exec, {lo}")
        else:
            E(f"s_mov_b32 exec_lo, 0x{lo:08x}")
            E(f"s_mov_b32 exec_hi, 0x{hi:08x}")

    def full():
        set_exec(0xffffffff, 0xffffffff)

    def mk_srd(n, ptr, nbytes):
        E(f"s_mov_b64 s[{n}:{n+1}], s[{ptr}:{ptr+1}]")
        if nbytes is not None:
            E(f"s_mov_b32 s{n+2}, 0x{nbytes:x}")
        E(f"s_mov_b32 s{n+3}, 0x20000")

    def mkB(setidx, src, dpp=None):
        for r in range(4):
            if dpp is None:
                E(f"v_and_b32 v{BB+4*setidx+r}, v{src}, v{M+r}")
            else:
                E(f"v_and_b32_dpp v{BB+4*setidx+r}, v{src}, v{M+r} row_newbcast:{dpp} row_mask:0xf bank_mask:0xf")

    def lds_spin(off, target, tmp, reads=(), sleep=2):
        L, D = newlab("sp"), newlab("spd")
        E("s_mov_b32 s9, 0x400000")
        e.label(L)
        E(f"ds_read_b32 v{tmp}, v{A_z} offset:{off}")
        for r in reads:
            E(r)
        E("s_waitcnt lgkmcnt(0)")
        E(f"v_readfirstlane_b32 s10, v{tmp}")
        E(f"s_cmp_ge_u32 s10, {target}")
        E(f"s_cbranch_scc1 {D}")
        E("s_sub_u32 s9, s9, 1")
        E("s_cmp_eq_u32 s9, 0")
        E(f"s_cbranch_scc1 {D}")
        E(f"s_sleep {sleep}")
        E(f"s_branch {L}")
        e.label(D)

    def lds_arrive(off, tmp, sdst):
        E(f"v_mov_b32 v{tmp}, 1")
        set_exec(1, 0)
        E(f"ds_add_rtn_u32 v{tmp}, v{A_z}, v{tmp} offset:{off}")
        full()
        E("s_waitcnt lgkmcnt(0)")
        E(f"v_readfirstlane_b32 s{sdst}, v{tmp}")

    def masks(t):
        E(f"v_and_b32 v{t}, 1, v0")
        E(f"v_cmp_eq_u32 vcc, 1, v{t}")
        E(f"v_mov_b32 v{t+1}, 0xffff")
        E(f"v_mov_b32 v{t+2}, 0xffff0000")
        E(f"v_cndmask_b32 v{t}, v{t+1}, v{t+2}, vcc")
        E(f"v_bfe_u32 v{t+1}, v0, 1, 2")
        for r in range(4):
            E(f"v_cmp_eq_u32 vcc, {r}, v{t+1}")
            E(f"v_cndmask_b32 v{M+r}, 0, v{t}, vcc")

    def fin_addrs(F, x, y, nunits):
        for k in range(nunits):
            a_y, a_a, a_o, xv = F + 4 * k, F + 4 * k + 1, F + 4 * k + 2, F + 4 * k + 3
            E(f"s_add_u32 s9, s3, {4*k}")
            E("s_mul_i32 s10, s9, 60")
            E(f"v_bfe_u32 v{x}, v0, 4, 2")
            E(f"v_mul_u32_u24 v{y}, 15, v{x}")
            E(f"v_and_b32 v{a_a}, 15, v0")
            E(f"v_add3_u32 v{y}, v{y}, v{a_a}, s10")
            E(f"v_cmp_gt_u32 vcc, 15, v{a_a}")
            E(f"v_mov_b32 v{a_o}, 0x3ff")
            E(f"v_cndmask_b32 v{y}, v{a_o}, v{y}, vcc")
            E("s_lshl_b32 s9, s9, 2")
            E("s_add_u32 s9, s9, s5")
            E("s_lshl_b32 s9, s9, 12")
            E(f"s_add_u32 s9, s9, {WS_ACC}")
            E(f"v_lshlrev_b32 v{a_a}, 2, v{a_a}")
            E(f"v_lshl_add_u32 v{a_a}, v{x}, 7, v{a_a}")
            E(f"v_add_u32 v{a_a}, s9, v{a_a}")
            E("s_mul_i32 s9, s5, 1280")
            E(f"v_lshl_add_u32 v{a_o}, v{y}, 1, s9")
            E(f"v_cmp_gt_u32 vcc, 640, v{y}")
            E(f"v_mov_b32 v{x}, 0x7fff0000")
            E(f"v_cndmask_b32 v{a_o}, v{x}, v{a_o}, vcc")
            E(f"v_cndmask_b32 v{y}, 0, v{y}, vcc")
            E(f"s_mov_b64 s[{92+2*k}:{93+2*k}], vcc")
            E(f"v_lshrrev_b32 v{a_y}, 5, v{y}")
            E(f"v_lshlrev_b32 v{a_y}, 8, v{a_y}")
            E(f"v_and_b32 v{x}, 7, v{y}")
            E(f"v_lshl_add_u32 v{a_y}, v{x}, 4, v{a_y}")
            E(f"v_bfe_u32 v{x}, v{y}, 3, 2")
            E(f"v_lshl_add_u32 v{a_y}, v{x}, 2, v{a_y}")
            E(f"v_add_u32 v{a_y}, {YP}, v{a_y}")

    def x_loads(F, nunits):
        for k in range(nunits):
            E(f"buffer_load_ushort v{F+4*k+3}, v{F+4*k+2}, {srd(sX)}, 0 offen")

    def final_unit(F, k, R, epoch):
        a_y, a_a, a_o, xv = F + 4 * k, F + 4 * k + 1, F + 4 * k + 2, F + 4 * k + 3
        for i in range(4):
            E(f"v_add_f32 v{R+i}, v{R+i}, v{R+4+i}")
        E(f"v_add_f32 v{R}, v{R}, v{R+1}")
        E(f"v_add_f32 v{R+2}, v{R+2}, v{R+3}")
        E(f"v_add_f32 v{R}, v{R}, v{R+2}")
        E(f"v_cndmask_b32 v{R}, 1.0, v{R}, s[{92+2*k}:{93+2*k}]")
        E(f"v_mov_b32 v{R+1}, v{R}")
        E(f"buffer_atomic_add_f32 v{R+1}, v{a_a}, {srd(sWS)}, 0 offen sc0", tag=f"fin{k}")
        E(f"v_lshlrev_b32 v{xv}, 16, v{xv}")
        E(f"v_add_f32 v{R}, v{R}, v{xv}")

    def final_reads(F, k, R):
        a_y = F + 4 * k
        E(f"v_add_u32 v{R+8}, 128, v{a_y}")
        for hl in range(2):
            for i in range(2):
                E(f"ds_read2st64_b32 {vr(R+4*hl+2*i,2)}, v{a_y if hl == 0 else R+8} offset0:{40*i} offset1:{40*i+20}")

    def final_store(F, k, R, epoch):
        a_o = F + 4 * k + 2
        L = newlab("nf")
        e.wait(f"fin{k}")
        E(f"v_mov_b32_dpp v{R+2}, v{R+1} row_newbcast:15 row_mask:0xf bank_mask:0xf")
        E(f"v_add_f32 v{R}, v{R}, v{R+1}")
        E(f"v_cmp_eq_f32 vcc, {f32(63.0)}, v{R+2}")
        E(f"v_cvt_pk_bf16_f32 v{R}, v{R}, v{R}")
        E("s_and_saveexec_b64 s[12:13], vcc")
        E(f"s_cbranch_execz {L}")
        save = list(e.vm)
        E(f"buffer_store_short v{R}, v{a_o}, {srd(sOUT)}, 0 offen")
        if epoch:
            E("s_or_b32 s9, s5, s3")
            E("s_cmp_eq_u32 s9, 0")
            E(f"s_cbranch_scc0 {L}")
            E("s_and_b64 exec, exec, 1")
            E(f"s_cbranch_execz {L}")
            E(f"v_mov_b32 v{R+3}, s90")
            E(f"s_mov_b32 s8, {WS_EPOCH}")
            E(f"buffer_store_dword v{R+3}, v{A_z}, {srd(sWS)}, s8 offen")
        e.label(L)
        e.vm = save
        full()

    E("s_cmp_ge_u32 s2, 256")
    E("s_cbranch_scc1 L_end")
    E("s_load_dwordx16 s[16:31], s[0:1], 0")
    E("s_load_dwordx8 s[32:39], s[0:1], 64")
    E("v_lshrrev_b32 v1, 6, v0")
    E(f"v_mov_b32 v{A_z}, 0")
    E("v_readfirstlane_b32 s3, v1")
    E(f"v_and_b32 v{T}, 63, v0")
    E("s_and_b32 s4, s2, 31")
    E("s_lshr_b32 s5, s2, 6")
    E("s_bfe_u32 s6, s2, 0x10005")
    E("s_lshl_b32 s7, s4, 1")
    E("s_add_u32 s7, s7, s6")
    E(f"s_mov_b32 s91, {f32(LOG2E)}")
    if stamps:
        E("s_lshl_b32 s98, s2, 4")
        E("s_add_u32 s98, s98, s3")
        E("s_lshl_b32 s98, s98, 6")
    E("s_and_b32 s15, s3, 3")
    E("s_cmp_lt_u32 s3, 4")
    E("s_cbranch_scc1 L_helper")
    hist0 = list(e.hist)

    vKV = 1
    Q = 36
    DO = 40
    S0 = 44
    FS = 52
    vW = 60
    SETS = [64 + 4 * i for i in range(P.get("NS", 48))]
    E("s_lshl_b32 s10, s5, 6")
    E("s_add_u32 s10, s10, s7")
    E("s_lshl_b32 s10, s10, 19")
    E("s_lshl_b32 s11, s15, 12")
    E("s_add_u32 s10, s10, s11")
    E(f"v_lshl_add_u32 v{vKV}, v{T}, 4, s10")
    E(f"s_mov_b32 s{sK+2}, 0x8000000")
    E(f"s_mov_b32 s{sK+3}, 0x20000")
    E("s_waitcnt lgkmcnt(0)")
    E(f"s_mov_b64 s[{sK}:{sK+1}], s[18:19]")
    free = list(SETS)
    where = {}

    def Wat(n):
        if "ws" in P:
            if n >= P.get("wsw", 999):
                return P.get("W2", 8)
            return int(str(P["ws"])[min(n, 255) // 32])
        return W if n < P.get("wsw", 230) else P.get("W2", 8)

    st = {"i": 0, "so": None}

    def issue():
        n = st["i"]
        if n >= 256 or not free:
            return False
        st["i"] += 1
        Wn = Wat(n)
        if n >= Wn:
            e.wait(f"kv{n-Wn}")
        free.sort()
        r = free.pop(0)
        where[n] = r
        t = n & 127
        so = (t >> 2) * 16384
        if so and st["so"] != so:
            E(f"s_mov_b32 s8, {so}")
            st["so"] = so
        E(f"buffer_load_dwordx4 {vr(r)}, v{vKV}, {srd(sK if n < 128 else sV)}, {'s8' if so else '0'} offen offset:{(t&3)*1024} {POL[P.get('kpol', 0) if n < 128 else P.get('vpol', 0)]}", tag=f"kv{n}")
        return True

    for _ in range(Wat(0)):
        issue()
    mk_srd(sV, 20, 0x8000000)
    mk_srd(sWS, 38, 0x20000000)
    mk_srd(sOUT, 34, 5120)
    mk_srd(sX, 16, 5120)
    E("s_mov_b32 s86, 0xcccccccc")
    E("s_mov_b32 s87, 0xcccccccc")
    E("s_mov_b32 s88, 0xaaaaaaaa")
    E("s_mov_b32 s89, 0xaaaaaaaa")
    masks(T + 1)
    fin_addrs(FS, T + 1, T + 2, 2)
    E("s_cmp_eq_u32 s3, 7")
    E(f"s_cselect_b32 s9, 0x7fff0000, 0")
    E(f"v_or_b32 v{FS+5}, s9, v{FS+5}")
    E(f"v_and_b32 v{T+1}, 7, v0")
    E(f"v_bfe_u32 v{T+2}, v0, 4, 2")
    E(f"v_lshl_add_u32 v{T+1}, v{T+2}, 3, v{T+1}")
    E("s_lshl_b32 s9, s15, 9")
    E(f"v_lshl_add_u32 v{A_o}, v{T+1}, 4, s9")
    E(f"v_and_b32 v{T+8}, 15, v0")
    E(f"v_lshlrev_b32 v{T+8}, 4, v{T+8}")
    stamp(0)
    E("s_barrier")
    while issue():
        pass
    stamp(1)
    lds_spin(QFLAG, 1, T + 9, [f"ds_read_b128 {vr(Q)}, v{T+8} offset:{QF}"], sleep=1)
    stamp(2)

    def k_consume(n):
        r = where[n]
        a = T + (n & 1)
        e.wait(f"kv{n}")
        E(f"v_dot2_f32_bf16 v{a}, v{r}, v{Q}, 0")
        for i in range(1, 4):
            E(f"v_dot2_f32_bf16 v{a}, v{r+i}, v{Q+i}, v{a}")
        free.append(r)

    def k_post(n):
        if n & 1:
            b = T + 2 + ((n >> 1) & 1)
            E(f"v_add_f32_dpp v{b}, v{T}, v{T} row_shl:8 row_mask:0xf bank_mask:0x3")
            E(f"v_add_f32_dpp v{b}, v{T+1}, v{T+1} row_shr:8 row_mask:0xf bank_mask:0xc")
        if (n & 3) == 3:
            d = T + 4 + ((n >> 2) & 1)
            E(f"v_add_f32_dpp v{d}, v{T+2}, v{T+2} row_shl:4 row_mask:0xf bank_mask:0x5")
            E(f"v_add_f32_dpp v{d}, v{T+3}, v{T+3} row_shr:4 row_mask:0xf bank_mask:0xa")
            E(f"v_add_f32_dpp v{d}, v{d}, v{d} quad_perm:[2,3,0,1] row_mask:0xf bank_mask:0xf")
        if (n & 7) == 7:
            ee = T + 6 + ((n >> 3) & 1)
            E(f"v_cndmask_b32 v{ee}, v{T+4}, v{T+5}, s[86:87]")
            E(f"v_add_f32_dpp v{ee}, v{ee}, v{ee} quad_perm:[1,0,3,2] row_mask:0xf bank_mask:0xf")
        if (n & 15) == 15:
            E(f"v_cndmask_b32 v{S0 + (n >> 4)}, v{T+6}, v{T+7}, s[88:89]")

    catch = P.get("catch", 3)
    first = P.get("first", W)
    cnt = 0
    for n in range(128):
        k_consume(n)
        cnt += 1
        lag = st["i"] - (n + 1)
        if n < first or lag < Wat(st["i"]) or cnt >= catch:
            issue()
            cnt = 0
            if st["i"] - (n + 1) < Wat(st["i"]):
                issue()
        k_post(n)
    for i in range(0, 8, 2):
        E(f"v_cvt_pk_bf16_f32 v{T+i}, v{S0+i}, v{S0+i+1}")
    for i in range(0, 8, 2):
        E(f"v_lshlrev_b32 v{S0+i}, 16, v{T+i}")
        E(f"v_and_b32 v{S0+i+1}, 0xffff0000, v{T+i}")
    for i in range(8):
        E(f"v_mul_f32 v{S0+i}, {f32(128 ** -0.5)}, v{S0+i}")
    for i in range(0, 8, 2):
        E(f"v_cvt_pk_bf16_f32 v{T+i}, v{S0+i}, v{S0+i+1}")
    for i in range(0, 8, 2):
        E(f"v_lshlrev_b32 v{S0+i}, 16, v{T+i}")
        E(f"v_and_b32 v{S0+i+1}, 0xffff0000, v{T+i}")
    E(f"v_max3_f32 v{T}, v{S0}, v{S0+1}, v{S0+2}")
    E(f"v_max3_f32 v{T+1}, v{S0+3}, v{S0+4}, v{S0+5}")
    E(f"v_max3_f32 v{T}, v{T}, v{S0+6}, v{S0+7}")
    E(f"v_max_f32 v{T}, v{T}, v{T+1}")
    reduce64(T, "max", 12, mid=issue)
    for i in range(8):
        E(f"v_subrev_f32 v{S0+i}, s12, v{S0+i}")
    for i in range(8):
        E(f"v_mul_f32 v{S0+i}, s91, v{S0+i}")
    for i in range(8):
        E(f"v_exp_f32 v{S0+i}, v{S0+i}")
    E(f"v_add_f32 v{T}, v{S0}, v{S0+1}")
    E(f"v_add_f32 v{T+1}, v{S0+2}, v{S0+3}")
    E(f"v_add_f32 v{T+2}, v{S0+4}, v{S0+5}")
    E(f"v_add_f32 v{T+3}, v{S0+6}, v{S0+7}")
    E(f"v_add_f32 v{T}, v{T}, v{T+1}")
    E(f"v_add_f32 v{T+2}, v{T+2}, v{T+3}")
    for i in range(8):
        E(f"v_cvt_pk_bf16_f32 v{S0+i}, v{S0+i}, v{S0+i}")
    E(f"v_add_f32 v{T}, v{T}, v{T+2}")
    reduce64(T, "add", 13, mid=issue)
    E(f"v_mov_b32 v{T+2}, s12")
    E(f"v_mov_b32 v{T+3}, s13")
    E("s_lshl_b32 s9, s15, 3")
    E(f"v_mov_b32 v{T+5}, s9")
    E(f"v_mov_b32 v{T+6}, 1")
    set_exec(1, 0)
    E(f"ds_write_b64 v{T+5}, {vr(T+2,2)} offset:{ST}")
    E(f"ds_add_u32 v{A_z}, v{T+6} offset:{KCNT}")
    full()
    stamp(3)
    mkB(0, S0, dpp=bitrev4(0))
    for n in range(128, 256):
        t = n - 128
        if t + 1 < 128:
            mkB((t + 1) & 1, S0 + ((t + 1) >> 4), dpp=bitrev4((t + 1) & 15))
        e.wait(f"kv{n}")
        E(f"v_mfma_f32_16x16x32_bf16 {vr(DO)}, {vr(where[n])}, {vr(BB+4*(t&1))}, {vr(DO) if t else '0'}")
        free.append(where[n])
        for _ in range(2):
            if st["i"] - (n + 1) < Wat(st["i"]):
                issue()
        if t == 100:
            x_loads(FS, 2)
        if t == 112:
            E("s_lshl_b32 s9, s15, 2")
            E(f"v_mov_b32 v{T}, s9")
            lds_spin(WFLAG, 1, T + 1, [f"ds_read_b32 v{vW}, v{T} offset:{WJ}"], sleep=2)
    stamp(4)
    set_exec(0x00ff00ff, 0x00ff00ff)
    for r in range(4):
        E(f"v_mul_f32 v{T+r}, v{DO+r}, v{vW}")
    E(f"ds_write_b128 v{A_o}, {vr(T)} offset:{OP}")
    full()
    E("s_waitcnt lgkmcnt(0)")
    E("s_barrier")
    stamp(8)
    e.vm = []
    E("s_barrier")
    final_reads(FS, 0, 64)
    final_reads(FS, 1, 76)
    stamp(10)
    E("s_waitcnt lgkmcnt(4)")
    final_unit(FS, 0, 64, False)
    E("s_waitcnt lgkmcnt(0)")
    final_unit(FS, 1, 76, False)
    final_store(FS, 0, 64, False)
    final_store(FS, 1, 76, False)
    stamp(7)
    E("s_endpgm")

    e.hist = hist0
    e.vm = []
    e.label("L_helper")
    DY = 36
    WD = 56
    WO = 96
    WQ, FA, DQ, DF = WO, WO + 20, WO + 40, WO + 48
    E(f"v_lshlrev_b32 v{T+6}, 3, v0")
    E(f"v_mov_b32 v{A_z+1}, 0")
    E(f"ds_write_b64 v{T+6}, {vr(A_z,2)} offset:{ZZ}")
    E(f"v_and_b32 v{T+1}, 15, v0")
    E(f"v_bfe_u32 v{T+2}, v0, 4, 2")
    E("s_mul_i32 s9, s15, 1280")
    E(f"v_lshl_add_u32 v{vA}, v{T}, 4, s9")
    E(f"v_lshl_add_u32 v{vB}, v{T}, 2, s9")
    E("s_lshr_b32 s11, s2, 5")
    E("s_mul_i32 s12, s11, 80")
    E("s_mul_i32 s13, s15, 20")
    E("s_add_u32 s12, s12, s13")
    E("s_lshl_b32 s10, s12, 13")
    E("s_lshl_b32 s13, s4, 8")
    E("s_add_u32 s10, s10, s13")
    E(f"v_mul_u32_u24 v{T+3}, {5*8192}, v{T+2}")
    E(f"v_lshl_add_u32 v{T+3}, v{T+1}, 4, v{T+3}")
    E(f"v_add_u32 v{T+3}, s10, v{T+3}")
    E("s_and_b32 s13, s2, 3")
    E("s_mul_i32 s13, s13, 160")
    E("s_mul_i32 s14, s15, 40")
    E("s_add_u32 s13, s13, s14")
    E("s_lshr_b32 s84, s2, 2")
    E("s_cmp_ge_u32 s84, 27")
    E("s_cselect_b32 s14, 27, 0")
    E("s_sub_u32 s14, s84, s14")
    E("s_lshl_b32 s14, s14, 7")
    E("s_mul_i32 s85, s13, 3456")
    E("s_add_u32 s14, s14, s85")
    E(f"v_lshrrev_b32 v{T+4}, 3, v{T}")
    E(f"v_mul_u32_u24 v{T+4}, 3456, v{T+4}")
    E(f"v_and_b32 v{T+5}, 7, v0")
    E(f"v_lshl_add_u32 v{T+4}, v{T+5}, 4, v{T+4}")
    E(f"v_add_u32 v{T+4}, s14, v{T+4}")
    E("s_cmp_lt_u32 s2, 216")
    E(f"s_cselect_b32 s{sF+2}, {0 if P.get('noffn') else 640*3456}, 0")
    E(f"s_mov_b32 s{sF+3}, 0x20000")
    E(f"s_mov_b32 s{sX+2}, 5120")
    E(f"s_mov_b32 s{sX+3}, 0x20000")
    E(f"s_mov_b32 s{sWQ+2}, {0 if P.get('nowq') else 640*8192}")
    E(f"s_mov_b32 s{sWQ+3}, 0x20000")
    E("s_waitcnt lgkmcnt(0)")
    E(f"s_mov_b64 s[{sX}:{sX+1}], s[16:17]")
    E(f"buffer_load_dwordx4 {vr(BB)}, v{vA}, {srd(sX)}, 0 offen", tag="x")
    E(f"buffer_load_dword v{BB+4}, v{vB}, {srd(sX)}, 0 offen offset:1024", tag="x")
    E(f"s_load_dword s90, s[38:39], {WS_EPOCH}")
    E(f"s_mov_b64 s[{sWQ}:{sWQ+1}], s[22:23]")
    for t in range(5):
        if t:
            E(f"s_mov_b32 s8, {t*8192}")
        E(f"buffer_load_dwordx4 {vr(WQ+4*t)}, v{T+3}, {srd(sWQ)}, {'s8' if t else '0'} offen {wfl}", tag=f"wq{t}")
    E("s_cmp_ge_u32 s84, 27")
    E(f"s_cselect_b64 s[{sF}:{sF+1}], s[30:31], s[28:29]")
    for u in range(5):
        if u:
            E(f"s_mov_b32 s8, {u*8*3456}")
        E(f"buffer_load_dwordx4 {vr(FA+4*u)}, v{T+4}, {srd(sF)}, {'s8' if u else '0'} offen {wfl}", tag=f"f{u}")
    if P.get("codepf", 1):
        E(f"s_getpc_b64 s[{sPC}:{sPC+1}]")
        e.label("L_pc")
        E(f"s_sub_u32 s{sPC}, s{sPC}, L_pc-{KN}")
        E(f"s_subb_u32 s{sPC+1}, s{sPC+1}, 0")
        E("s_cmp_lt_u32 s2, %d" % P.get("codewg", 16))
        E(f"s_cselect_b32 s{sPC+2}, L_codeend-{KN}, 0")
        E(f"s_mov_b32 s{sPC+3}, 0x20000")
        E(f"v_lshlrev_b32 v{T+7}, 7, v0")
        E(f"buffer_load_dword v{T+15}, v{T+7}, {srd(sPC)}, 0 offen")
    mk_srd(sWS, 38, 0x20000000)
    mk_srd(sOUT, 34, 5120)
    mk_srd(sWO, 24, 0 if P.get('nowo') else 4096 * 1280)
    mk_srd(sWD, 32, 0 if P.get('nowo') else 1728 * 1280)
    E("s_barrier")
    stamp(0)
    masks(T + 6)
    X = WD
    t0, t1, t2, t3, t4 = WD + 10, WD + 11, WD + 12, WD + 13, WD + 14
    E(f"v_lshlrev_b32 v{t3}, 5, v{T}")
    E("s_mul_i32 s9, s15, 2560")
    E(f"v_add_u32 v{t3}, s9, v{t3}")
    E(f"v_lshlrev_b32 v{t4}, 3, v{T}")
    E(f"v_add_u32 v{t4}, s9, v{t4}")
    E(f"s_mov_b32 s10, {f32(640.0)}")
    E(f"s_mov_b32 s14, {f32(1.0/640.0)}")
    E(f"v_bfe_u32 v{vA}, v0, 3, 1")
    E(f"v_mul_u32_u24 v{vA}, 2560, v{vA}")
    E(f"v_mul_u32_u24 v{vB}, 20, v{T+2}")
    E("s_lshl_b32 s9, s12, 2")
    E(f"v_add3_u32 v{vA}, v{vA}, v{vB}, s9")
    E(f"v_lshrrev_b32 v{vB}, 3, v{T}")
    E("s_lshl_b32 s9, s13, 2")
    E(f"v_lshl_add_u32 v{vB}, v{vB}, 2, s9")
    vBf = T + 14
    E(f"v_mov_b32 v{vBf}, v{vB}")
    e.wait("x")
    for i in range(5):
        E(f"v_lshlrev_b32 v{X+2*i}, 16, v{BB+i}")
        E(f"v_and_b32 v{X+2*i+1}, 0xffff0000, v{BB+i}")
    E(f"v_add_f32 v{t0}, v{X}, v{X+1}")
    E(f"v_add_f32 v{t1}, v{X+2}, v{X+3}")
    for i in range(4, 10, 2):
        E(f"v_add_f32 v{t0}, v{t0}, v{X+i}")
        E(f"v_add_f32 v{t1}, v{t1}, v{X+i+1}")
    E(f"v_add_f32 v{t0}, v{t0}, v{t1}")
    reduce64(t0, "add", 9)

    def div640(dst, tmp):
        E(f"v_mov_b32 v{tmp}, s9")
        E(f"v_mul_f32 v{dst}, s14, v{tmp}")
        E(f"v_fma_f32 v{tmp}, -v{dst}, s10, v{tmp}")
        E(f"v_fma_f32 v{dst}, v{tmp}, s14, v{dst}")

    div640(t2, t1)
    E(f"v_sub_f32 v{BB}, v{X}, v{t2}")
    E(f"v_sub_f32 v{BB+1}, v{X+1}, v{t2}")
    E(f"v_mul_f32 v{t0}, v{BB}, v{BB}")
    E(f"v_mul_f32 v{t1}, v{BB+1}, v{BB+1}")
    for i in range(2, 10, 2):
        E(f"v_sub_f32 v{BB}, v{X+i}, v{t2}")
        E(f"v_sub_f32 v{BB+1}, v{X+i+1}, v{t2}")
        E(f"v_fmac_f32 v{t0}, v{BB}, v{BB}")
        E(f"v_fmac_f32 v{t1}, v{BB+1}, v{BB+1}")
    E(f"v_add_f32 v{t0}, v{t0}, v{t1}")
    reduce64(t0, "add", 9)
    div640(t0, t1)
    E(f"v_cvt_pk_bf16_f32 v{t1}, v{t2}, v{t0}")
    E(f"v_lshlrev_b32 v{t2}, 16, v{t1}")
    E(f"v_and_b32 v{t0}, 0xffff0000, v{t1}")
    E(f"v_add_f32 v{t0}, {f32(1e-5)}, v{t0}")
    E(f"v_cvt_pk_bf16_f32 v{t0}, v{t0}, v{t0}")
    E(f"v_and_b32 v{t0}, 0xffff0000, v{t0}")
    E(f"v_sqrt_f32 v{t0}, v{t0}")
    E(f"v_cvt_pk_bf16_f32 v{t0}, v{t0}, v{t0}")
    E(f"v_and_b32 v{t0}, 0xffff0000, v{t0}")
    E(f"v_rcp_f32 v{t0}, v{t0}")
    for i in range(0, 10, 2):
        E(f"v_sub_f32 v{X+i}, v{X+i}, v{t2}")
        E(f"v_sub_f32 v{X+i+1}, v{X+i+1}, v{t2}")
        E(f"v_cvt_pk_bf16_f32 v{t1}, v{X+i}, v{X+i+1}")
        E(f"v_lshlrev_b32 v{X+i}, 16, v{t1}")
        E(f"v_and_b32 v{X+i+1}, 0xffff0000, v{t1}")
        E(f"v_mul_f32 v{X+i}, v{X+i}, v{t0}")
        E(f"v_mul_f32 v{X+i+1}, v{X+i+1}, v{t0}")
        E(f"v_cvt_pk_bf16_f32 v{X+i}, v{X+i}, v{X+i}")
        E(f"v_cvt_pk_bf16_f32 v{X+i+1}, v{X+i+1}, v{X+i+1}")
    E(f"v_mov_b32 v{t1}, 1")
    E(f"ds_write_b128 v{t3}, {vr(X)} offset:{XS}")
    E(f"ds_write_b128 v{t3}, {vr(X+4)} offset:{XS+16}")
    E(f"ds_write_b64 v{t4}, {vr(X+8,2)} offset:{XS+2048}")
    set_exec(1, 0)
    E(f"ds_add_u32 v{A_z}, v{t1} offset:{XCNT}")
    full()
    QV, FV = WO + 64, WO + 76
    E(f"v_lshl_add_u32 v{T+11}, v{T+2}, 3, v{T+5}")
    E(f"v_lshlrev_b32 v{T+11}, 4, v{T+11}")
    E(f"v_bfe_u32 v{T+10}, v0, 3, 1")
    E(f"v_lshl_add_u32 v{T+11}, v{T+10}, 9, v{T+11}")
    E("s_lshl_b32 s85, s15, 11")
    E(f"v_add_u32 v{T+11}, s85, v{T+11}")
    E(f"v_lshlrev_b32 v{T+10}, 4, v{T}")
    E(f"v_lshlrev_b32 v{T+12}, 3, v0")
    rd = [f"ds_read_b32 v{QV+5*p+t}, v{vA} offset:{XS+p*5120+4*t}" for p in range(2) for t in range(5)]
    lds_spin(XCNT, 4, T + 9, rd, sleep=1)
    E("s_mul_i32 s90, s90, 1664525")
    E("s_add_u32 s90, s90, 1013904223")
    seq = [(t, p) for t in range(5) for p in range(2)]
    mkB(0, QV)
    for i, (t, p) in enumerate(seq):
        if i + 1 < len(seq):
            mkB((i + 1) & 1, QV + 5 * seq[i + 1][1] + seq[i + 1][0])
        if p == 0:
            e.wait(f"wq{t}")
        E(f"v_mfma_f32_16x16x32_bf16 {vr(DQ+4*p)}, {vr(WQ+4*t)}, {vr(BB+4*(i&1))}, {vr(DQ+4*p) if t else '0'}")
    for b in range(2):
        for u in range(5):
            E(f"ds_read_b32 v{FV+5*b+u}, v{vB} offset:{XS+b*2560+u*32}")
    E(f"v_mov_b32 v{T+9}, 1")
    for p in range(2):
        E(f"ds_write_b128 v{T+11}, {vr(DQ+4*p)} offset:{QP+p*1024}")
    set_exec(1, 0)
    E(f"ds_add_u32 v{A_z}, v{T+9} offset:{QCNT}")
    full()
    E("s_lshl_b32 s8, s4, 2")
    E("s_add_u32 s8, s8, s15")
    E("s_lshl_b32 s8, s8, 3")
    E("s_add_u32 s8, s8, s11")
    E("s_lshl_b32 s8, s8, 10")
    E(f"s_add_u32 s8, s8, {WS_Q}")
    E("s_waitcnt lgkmcnt(0)")
    R = QV
    lds_spin(QCNT, 4, T + 9, [f"ds_read_b64 {vr(R+2*k,2)}, v{T+12} offset:{QP+k*2048}" for k in range(4)], sleep=1)
    E(f"v_add_f32 v{R}, v{R}, v{R+2}")
    E(f"v_add_f32 v{R+1}, v{R+1}, v{R+3}")
    E(f"v_add_f32 v{R+4}, v{R+4}, v{R+6}")
    E(f"v_add_f32 v{R+5}, v{R+5}, v{R+7}")
    E(f"v_add_f32 v{DQ}, v{R}, v{R+4}")
    E(f"v_add_f32 v{DQ+2}, v{R+1}, v{R+5}")
    E(f"v_mov_b32 v{DQ+1}, s90")
    E(f"v_mov_b32 v{DQ+3}, s90")
    if not P.get("noq"):
        E(f"buffer_store_dwordx4 {vr(DQ)}, v{T+10}, {srd(sWS)}, s8 offen sc1", tag="qst")
    stamp(4)
    for b in range(2, 4):
        for u in range(5):
            E(f"ds_read_b32 v{FV+5*b+u}, v{vBf} offset:{XS+b*2560+u*32}")
    seq = [(u, b) for u in range(5) for b in range(4)]
    E("s_waitcnt lgkmcnt(0)")
    mkB(0, FV)
    for i, (u, b) in enumerate(seq):
        if i + 1 < len(seq):
            mkB((i + 1) & 1, FV + 5 * seq[i + 1][1] + seq[i + 1][0])
        if b == 0:
            e.wait(f"f{u}")
        E(f"v_mfma_f32_16x16x32_bf16 {vr(DF+4*b)}, {vr(FA+4*u)}, {vr(BB+4*(i&1))}, {vr(DF+4*b) if u else '0'}")
    E(f"v_bfe_u32 v{vB}, v0, 4, 1")
    E(f"v_lshl_add_u32 v{vA}, v{vB}, 3, v{T+5}")
    E(f"v_lshlrev_b32 v{vA}, 4, v{vA}")
    E(f"v_bfe_u32 v{vB}, v0, 5, 1")
    E(f"v_lshl_add_u32 v{vA}, v{vB}, 10, v{vA}")
    E(f"v_add_u32 v{vA}, s85, v{vA}")
    set_exec(0x00ff00ff, 0xff00ff00)
    for b in range(4):
        E(f"ds_write_b128 v{vA}, {vr(DF+4*b)} offset:{FP+b*256}")
    full()
    wothr = P.get("wothr", 3)
    E(f"v_lshlrev_b32 v{T+3}, 4, v{T+1}")
    E(f"v_mul_u32_u24 v{T+4}, {2*1280}, v{T+2}")
    E(f"v_add_u32 v{T+3}, v{T+3}, v{T+4}")
    E("s_mul_i32 s9, s7, 27")
    E("s_lshl_b32 s10, s15, 3")
    E("s_add_u32 s9, s9, s10")
    E("s_mul_i32 s9, s9, 1280")
    E(f"v_add_u32 v{T+4}, s9, v{T+3}")
    E(f"v_lshl_add_u32 v{T+8}, v{T+2}, 1, s10")
    E(f"v_cmp_lt_u32 vcc, 26, v{T+8}")
    E(f"v_mov_b32 v{T+9}, 0x7fff0000")
    E(f"v_cndmask_b32 v{T+4}, v{T+4}, v{T+9}, vcc")
    E("s_lshl_b32 s9, s4, 7")
    E("s_lshl_b32 s10, s15, 5")
    E("s_add_u32 s9, s9, s10")
    E("s_mul_i32 s9, s9, 1280")
    E(f"v_add_u32 v{T+3}, s9, v{T+3}")
    tags = []

    def paced(text, tag):
        if wothr and len(tags) >= wothr:
            e.wait(tags[-wothr])
        E(text, tag=tag)
        tags.append(tag)

    wdl = [(k, cb) for k in range(2) for cb in range(5)]
    qdel = P.get("qdel", 6)

    def wd_load(k, cb):
        paced(f"buffer_load_dwordx4 {vr(WD+20*k+4*cb)}, v{T+4}, {srd(sWD)}, 0 offen offset:{k*1280+cb*256} {wfl}", f"wd{k}_{cb}")

    for k, cb in wdl[:qdel]:
        wd_load(k, cb)
    E("s_lshl_b32 s8, s4, 2")
    E("s_add_u32 s8, s8, s5")
    E("s_lshl_b32 s8, s8, 13")
    E("s_add_u32 s8, s8, s85")
    E(f"s_add_u32 s8, s8, {WS_Q}")
    G = WQ
    for k in range(0 if P.get("noq") else 2):
        E(f"buffer_load_dwordx4 {vr(G+4*k)}, v{T+10}, {srd(sWS)}, s8 offen offset:{k*1024} sc1")
    E("s_mov_b32 s9, %d" % (1 if P.get("noq") else 0x100000))
    e.label("L_qpoll")
    E("s_waitcnt vmcnt(0)")
    E(f"v_xor_b32 v{G+1}, s90, v{G+1}")
    E(f"v_xor_b32 v{G+3}, s90, v{G+3}")
    E(f"v_xor_b32 v{G+5}, s90, v{G+5}")
    E(f"v_xor_b32 v{G+7}, s90, v{G+7}")
    E(f"v_or3_b32 v{G+1}, v{G+1}, v{G+3}, v{G+5}")
    E(f"v_or_b32 v{G+1}, v{G+1}, v{G+7}")
    E(f"v_cmp_ne_u32 vcc, 0, v{G+1}")
    E("s_sub_u32 s9, s9, 1")
    E("s_nop 3")
    E("s_cbranch_vccz L_qok")
    E("s_cmp_eq_u32 s9, 0")
    E("s_cbranch_scc1 L_qok")
    E("s_sleep %d" % P.get("qsleep", 4))
    for k in range(2):
        E(f"buffer_load_dwordx4 {vr(G+4*k)}, v{T+10}, {srd(sWS)}, s8 offen offset:{k*1024} sc1")
    E("s_branch L_qpoll")
    e.label("L_qok")
    e.vm = []
    E(f"v_add_f32 v{G}, v{G}, v{G+4}")
    E(f"v_add_f32 v{G+1}, v{G+2}, v{G+6}")
    E(f"ds_write_b64 v{T+12}, {vr(G,2)} offset:{QS}")
    lds_arrive(GCNT, T + 9, 9)
    E("s_cmp_eq_u32 s9, 3")
    E("s_cbranch_scc0 L_notq")
    E(f"v_lshlrev_b32 v{T+13}, 3, v{T}")
    for k in range(4):
        E(f"ds_read_b64 {vr(G+2*k,2)}, v{T+13} offset:{QS+k*512}")
    F = WO + 32
    for k in range(8):
        E(f"ds_read_b128 {vr(F+4*k)}, v{T+10} offset:{FP+k*1024}")
    E(f"v_lshlrev_b32 v{vA}, 5, v{T+2}")
    E(f"v_and_b32 v{vB}, 1, v0")
    E(f"v_lshl_add_u32 v{vA}, v{vB}, 4, v{vA}")
    E(f"v_bfe_u32 v{vB}, v0, 1, 3")
    E(f"v_add_lshl_u32 v{vA}, v{vA}, v{vB}, 1")
    E(f"v_mov_b32 v{T+9}, 1")
    E("s_waitcnt lgkmcnt(8)")
    E(f"v_add_f32 v{G}, v{G}, v{G+2}")
    E(f"v_add_f32 v{G+1}, v{G+1}, v{G+3}")
    E(f"v_add_f32 v{G+4}, v{G+4}, v{G+6}")
    E(f"v_add_f32 v{G+5}, v{G+5}, v{G+7}")
    E(f"v_add_f32 v{G}, v{G}, v{G+4}")
    E(f"v_add_f32 v{G+1}, v{G+1}, v{G+5}")
    E(f"v_cvt_pk_bf16_f32 v{G}, v{G}, v{G+1}")
    E(f"ds_write_b16 v{vA}, v{G} offset:{QF}")
    E(f"ds_write_b16_d16_hi v{vA}, v{G} offset:{QF+16}")
    E(f"ds_write_b32 v{A_z}, v{T+9} offset:{QFLAG}")
    E("s_waitcnt lgkmcnt(0)")
    E("s_cmp_lt_u32 s2, 216")
    E("s_cbranch_scc0 L_nofpub")
    for r in range(16):
        E(f"v_add_f32 v{F+r}, v{F+r}, v{F+16+r}")
    for r in range(8):
        E(f"v_add_f32 v{F+r}, v{F+r}, v{F+8+r}")
    for r in range(4):
        E(f"v_add_f32 v{F+8+2*r}, v{F+r}, v{F+4+r}")
        E(f"v_mov_b32 v{F+9+2*r}, s90")
    E(f"v_lshlrev_b32 v{T+13}, 5, v{T}")
    E("s_lshl_b32 s8, s2, 11")
    E(f"buffer_store_dwordx4 {vr(F+8)}, v{T+13}, {srd(sWS)}, s8 offen sc1")
    E(f"buffer_store_dwordx4 {vr(F+12)}, v{T+13}, {srd(sWS)}, s8 offen offset:16 sc1")
    E("s_branch L_notq")
    e.label("L_nofpub")
    E(f"s_cmp_ge_u32 s2, {ZWG}")
    E("s_cbranch_scc0 L_notq")
    for r in range(4):
        E(f"v_mov_b32 v{F+r}, 0")
    E(f"s_sub_u32 s9, s2, {ZWG}")
    E("s_lshl_b32 s8, s9, 12")
    E(f"s_add_u32 s8, s8, {WS_ACC}")
    set_exec(0xffffffff, 0)
    for k in range(11):
        E(f"buffer_store_dwordx4 {vr(F)}, v{T+10}, {srd(sWS)}, s8 offen sc1")
        E("s_add_u32 s8, s8, 16384")
    E(f"v_mov_b32 v{F+4}, s90")
    E("s_lshl_b32 s8, s9, 7")
    E(f"s_add_u32 s8, s8, {WS_AFL}")
    E("s_waitcnt vmcnt(0)")
    set_exec(1, 0)
    E(f"buffer_store_dword v{F+4}, v{A_z}, {srd(sWS)}, s8 offen sc1")
    full()
    e.label("L_notq")
    E("s_nop 1")
    e.vm = []
    stamp(1)
    for k, cb in wdl[qdel:]:
        wd_load(k, cb)
    for t in range(8):
        so = ((t & 3) * 8 + (t >> 2)) * 1280
        if so:
            E(f"s_mov_b32 s8, {so}")
        for cb in range(5):
            paced(f"buffer_load_dwordx4 {vr(WO+20*t+4*cb)}, v{T+3}, {srd(sWO)}, {'s8' if so else '0'} offen offset:{cb*256} {wfl}", f"wo{t}_{cb}")
    stamp(2)
    E(f"v_bfe_u32 v{T+9}, v0, 3, 1")
    E(f"v_lshlrev_b32 v{T+9}, 8, v{T+9}")
    E(f"v_lshl_add_u32 v{T+8}, v{T+8}, 2, v{T+9}")
    E("s_cmp_eq_u32 s15, 0")
    E("s_cbranch_scc0 L_nosvc1")
    save = list(e.vm)
    a0, a1, hh = T + 9, T + 10, DY
    E(f"v_lshlrev_b32 v{T+11}, 2, v{T}")
    E("s_mul_i32 s9, s7, 27")
    E(f"v_add_u32 v{a0}, s9, v{T}")
    E(f"v_lshrrev_b32 v{a1}, 6, v{a0}")
    E(f"v_lshlrev_b32 v{a1}, 13, v{a1}")
    E(f"v_bfe_u32 v{hh}, v{a0}, 5, 1")
    E(f"v_lshl_add_u32 v{a1}, v{hh}, 8, v{a1}")
    E(f"v_and_b32 v{hh}, 7, v{a0}")
    E(f"v_lshl_add_u32 v{a1}, v{hh}, 5, v{a1}")
    E(f"v_bfe_u32 v{hh}, v{a0}, 3, 2")
    E(f"v_lshl_add_u32 v{a1}, v{hh}, 3, v{a1}")
    E("s_lshl_b32 s8, s5, 9")
    E(f"v_add_u32 v{a1}, s8, v{a1}")
    E("s_lshl_b32 s14, s5, 7")
    E(f"s_add_u32 s14, s14, {WS_AFL}")
    E("s_mov_b32 s9, 0x100000")
    set_exec(0x07ffffff, 0)
    e.label("L_poll")
    for m in range(2):
        for s in range(4):
            if s % 2 == 0:
                E(f"s_mov_b32 s8, {m*27*8192 + s*2048}")
            E(f"buffer_load_dwordx2 {vr(hh+8*m+2*s,2)}, v{a1}, {srd(sWS)}, s8 offen offset:{(s%2)*2048} sc1")
    E(f"buffer_load_dword v{hh+16}, v{A_z}, {srd(sWS)}, s14 offen sc1")
    E("s_waitcnt vmcnt(0)")
    E(f"v_xor_b32 v{hh+16}, s90, v{hh+16}")
    for k in range(8):
        E(f"v_xor_b32 v{hh+2*k+1}, s90, v{hh+2*k+1}")
    for k in range(0, 8, 2):
        E(f"v_or3_b32 v{hh+16}, v{hh+16}, v{hh+2*k+1}, v{hh+2*k+3}")
    E(f"v_cmp_ne_u32 vcc, 0, v{hh+16}")
    E("s_sub_u32 s9, s9, 1")
    E("s_nop 3")
    E("s_cbranch_vccz L_polldone")
    E("s_cmp_eq_u32 s9, 0")
    E("s_cbranch_scc1 L_polldone")
    E("s_sleep 32")
    E("s_branch L_poll")
    e.label("L_polldone")
    E(f"v_add_f32 v{hh}, v{hh}, v{hh+2}")
    E(f"v_add_f32 v{hh+1}, v{hh+4}, v{hh+6}")
    E(f"v_add_f32 v{hh+4}, v{hh+8}, v{hh+10}")
    E(f"v_add_f32 v{hh+5}, v{hh+12}, v{hh+14}")
    E(f"v_add_f32 v{hh}, v{hh}, v{hh+1}")
    E(f"v_add_f32 v{hh+4}, v{hh+4}, v{hh+5}")
    E(f"v_cvt_pk_bf16_f32 v{hh+1}, v{hh}, v{hh+4}")
    E(f"v_lshlrev_b32 v{hh}, 16, v{hh+1}")
    E(f"v_and_b32 v{hh+4}, 0xffff0000, v{hh+1}")
    E(f"v_mul_f32 v{hh+2}, {f32(-LOG2E)}, v{hh}")
    E(f"v_exp_f32 v{hh+2}, v{hh+2}")
    E(f"v_add_f32 v{hh+2}, 1.0, v{hh+2}")
    E(f"v_rcp_f32 v{hh+2}, v{hh+2}")
    E(f"v_mul_f32 v{hh}, v{hh}, v{hh+2}")
    E(f"v_cvt_pk_bf16_f32 v{hh}, v{hh}, v{hh}")
    E(f"v_and_b32 v{hh}, 0xffff0000, v{hh}")
    E(f"v_mul_f32 v{hh}, v{hh}, v{hh+4}")
    E(f"v_cvt_pk_bf16_f32 v{hh}, v{hh}, v{hh}")
    E(f"v_mov_b32 v{hh+1}, 1")
    E(f"ds_write_b32 v{T+11}, v{hh} offset:{HS}")
    E(f"ds_write_b32 v{A_z}, v{hh+1} offset:{HSF}")
    full()
    e.label("L_nosvc1")
    e.vm = save
    lds_spin(HSF, 1, T + 9, [f"ds_read_b64 {vr(T+10,2)}, v{T+8} offset:{HS}"], sleep=16)
    e.wait("wd1_4")
    for k in range(2):
        mkB(k, T + 10 + k)
    for k in range(2):
        for cb in range(5):
            E(f"v_mfma_f32_16x16x32_bf16 {vr(DY+4*cb)}, {vr(WD+20*k+4*cb)}, {vr(BB+4*k)}, {vr(DY+4*cb) if k else '0'}")
    stamp(3)
    E("s_cmp_eq_u32 s15, 0")
    E("s_cbranch_scc0 L_nosvc2")
    save = list(e.vm)
    mW, lW, FJ = T + 14, T + 15, T + 13
    E(f"v_and_b32 v{T+9}, 3, v0")
    E(f"v_lshlrev_b32 v{T+8}, 3, v{T+9}")
    E(f"v_lshlrev_b32 v{T+9}, 2, v{T+9}")
    lds_spin(KCNT, 4, T + 12, [f"ds_read_b64 {vr(T+10,2)}, v{T+8} offset:{ST}"], sleep=16)
    E(f"v_max_f32_dpp v{mW}, v{T+10}, v{T+10} quad_perm:[1,0,3,2] row_mask:0xf bank_mask:0xf")
    E(f"v_max_f32_dpp v{mW}, v{mW}, v{mW} quad_perm:[2,3,0,1] row_mask:0xf bank_mask:0xf")
    E(f"v_sub_f32 v{FJ}, v{T+10}, v{mW}")
    E(f"v_mul_f32 v{FJ}, s91, v{FJ}")
    E(f"v_exp_f32 v{FJ}, v{FJ}")
    E(f"v_mul_f32 v{lW}, v{FJ}, v{T+11}")
    E(f"v_add_f32_dpp v{lW}, v{lW}, v{lW} quad_perm:[1,0,3,2] row_mask:0xf bank_mask:0xf")
    E(f"v_add_f32_dpp v{lW}, v{lW}, v{lW} quad_perm:[2,3,0,1] row_mask:0xf bank_mask:0xf")
    MB = WD
    E(f"v_mov_b32 v{MB}, v{mW}")
    E(f"v_mov_b32 v{MB+1}, s90")
    E(f"v_mov_b32 v{MB+2}, v{lW}")
    E(f"v_mov_b32 v{MB+3}, s90")
    E("s_lshl_b32 s9, s2, 7")
    E(f"s_add_u32 s8, s9, {WS_MBOX}")
    set_exec(1, 0)
    E(f"buffer_store_dwordx4 {vr(MB)}, v{A_z}, {srd(sWS)}, s8 offen sc1")
    full()
    E(f"s_xor_b32 s8, s8, {32*128}")
    E("s_mov_b32 s9, 0x100000")
    e.label("L_mb")
    E("s_sleep %d" % P.get("mbsleep", 64))
    E(f"buffer_load_dwordx4 {vr(MB+4)}, v{A_z}, {srd(sWS)}, s8 offen sc1")
    E("s_waitcnt vmcnt(0)")
    E(f"v_readfirstlane_b32 s10, v{MB+5}")
    E(f"v_readfirstlane_b32 s14, v{MB+7}")
    E("s_sub_u32 s9, s9, 1")
    E("s_cmp_eq_u32 s9, 0")
    E("s_cbranch_scc1 L_mbdone")
    E("s_cmp_eq_u32 s10, s90")
    E("s_cbranch_scc0 L_mb")
    E("s_cmp_eq_u32 s14, s90")
    E("s_cbranch_scc0 L_mb")
    e.label("L_mbdone")
    m2, l2 = MB + 4, MB + 6
    E(f"v_max_f32 v{T+6}, v{mW}, v{m2}")
    E(f"v_sub_f32 v{T+7}, v{mW}, v{T+6}")
    E(f"v_sub_f32 v{T+8}, v{m2}, v{T+6}")
    E(f"v_mul_f32 v{T+7}, s91, v{T+7}")
    E(f"v_mul_f32 v{T+8}, s91, v{T+8}")
    E(f"v_exp_f32 v{T+7}, v{T+7}")
    E(f"v_exp_f32 v{T+8}, v{T+8}")
    E(f"v_mul_f32 v{T+6}, v{lW}, v{T+7}")
    E(f"v_fmac_f32 v{T+6}, v{l2}, v{T+8}")
    E(f"v_rcp_f32 v{T+6}, v{T+6}")
    E(f"v_mul_f32 v{T+7}, v{T+7}, v{FJ}")
    E(f"v_mul_f32 v{T+6}, v{T+6}, v{T+7}")
    E(f"v_mov_b32 v{T+7}, 1")
    E(f"ds_write_b32 v{T+9}, v{T+6} offset:{WJ}")
    E(f"ds_write_b32 v{A_z}, v{T+7} offset:{WFLAG}")
    e.label("L_nosvc2")
    e.vm = save
    FH = WD + 32
    fin_addrs(FH, T + 6, T + 7, 1)
    x_loads(FH, 1)
    E("s_lshl_b32 s9, s15, 7")
    E(f"v_lshl_add_u32 v{A_o}, v{T+2}, 5, s9")
    mL = T + 11
    E(f"v_cmp_lt_u32 vcc, 7, v{T+1}")
    E(f"v_mov_b32 v{T+9}, 0xffff0000")
    E(f"v_cndmask_b32 v{mL}, 0, v{T+9}, vcc")
    SEL = T + 12
    E(f"v_mov_b32 v{T+9}, 0x03020302")
    E(f"v_mov_b32 v{T+10}, 0x0c0c0c0c")
    for r in range(4):
        E(f"v_bfi_b32 v{SEL+r}, v{M+r}, v{T+9}, v{T+10}")
    E("s_mul_i32 s9, s15, 5120")
    E(f"v_lshl_add_u32 v{T+8}, v{T}, 4, s9")
    stamp(9)
    cstamp(5)
    E("s_waitcnt vmcnt(0) lgkmcnt(0)")
    E("s_barrier")
    cstamp(0)
    OB = [BB, BB + 4, T, T + 4]
    BS = WD
    OC = [BS + 16 + 4 * s_ for s_ in range(4)]
    for s_ in range(4):
        E(f"ds_read_b128 {vr(OB[s_])}, v{A_o} offset:{OP+s_*512}")
    for s_ in range(4):
        E(f"ds_read_b128 {vr(OC[s_])}, v{A_o} offset:{OP+s_*512+16}")
    stamp(8)

    def sum_ops(src, dst, r):
        return [f"v_pk_add_f32 {vr(src[0]+r,2)}, {vr(src[0]+r,2)}, {vr(src[1]+r,2)}",
                f"v_pk_add_f32 {vr(src[2]+r,2)}, {vr(src[2]+r,2)}, {vr(src[3]+r,2)}",
                f"v_pk_add_f32 {vr(dst+r,2)}, {vr(src[0]+r,2)}, {vr(src[2]+r,2)}"]

    def prep_ops(t):
        o = BB + t
        ops = [f"v_and_b32 v{T+9+(t&1)}, v{o}, v{mL}", f"v_sub_f32 v{o}, v{o}, v{T+9+(t&1)}"]
        ops += [f"v_perm_b32 v{BS+4*t+r}, v{o}, v{o}, v{SEL+r}" for r in range(4)]
        return ops

    E("s_waitcnt lgkmcnt(%d)" % (0 if stamps == 2 else 4))
    cstamp(1)
    for op in sum_ops(OB, BB, 0) + prep_ops(0):
        E(op)
    pend = prep_ops(1) + sum_ops(OB, BB, 2) + prep_ops(2) + ["s_waitcnt lgkmcnt(0)"] + sum_ops(OC, BB + 4, 0) + sum_ops(OC, BB + 4, 2)
    pend += [op for t in range(3, 8) for op in prep_ops(t)]
    last_needed = {}
    for i_, op in enumerate(pend):
        if op.startswith("v_perm"):
            last_needed[(int(op.split()[1][1:-1]) - BS) // 4] = i_ + 1
    nt = P.get("nt", 5)
    order = [(t, cb) for t in range(nt) for cb in range(5)] + [(t, cb) for cb in range(5) for t in range(nt, 8)]
    done = 0
    wr = []
    for i, (t, cb) in enumerate(order):
        while done < last_needed.get(t, 0):
            E(pend.pop(0)); done += 1
        E(f"v_mfma_f32_16x16x32_bf16 {vr(DY+4*cb)}, {vr(WO+20*t+4*cb)}, {vr(BS+4*t)}, {vr(DY+4*cb)}")
        for _ in range(P.get("ppm", 2)):
            if pend:
                E(pend.pop(0)); done += 1
        if t == 7:
            wr.append((i, cb))
        if wr and i - wr[0][0] >= 8:
            E(f"ds_write_b128 v{T+8}, {vr(DY+4*wr[0][1])} offset:{YP+wr[0][1]*1024}")
            wr.pop(0)
    cstamp(2)
    for _, cb in wr:
        E(f"ds_write_b128 v{T+8}, {vr(DY+4*cb)} offset:{YP+cb*1024}")
    E("s_waitcnt lgkmcnt(0)")
    e.vm = []
    E("s_barrier")
    cstamp(3)
    final_reads(FH, 0, WO)
    E("s_waitcnt lgkmcnt(0)")
    final_unit(FH, 0, WO, True)
    final_store(FH, 0, WO, True)
    cstamp(4)
    stamp(7)
    cflush(6)
    e.label("L_end")
    E("s_endpgm")
    e.label("L_codeend")

    out = HEADER
    out += f"; @launch grid=(256,1,1) block=(512,1,1) lds={LDS_BYTES}\n"
    out += '.amdgcn_target "amdgcn-amd-amdhsa--gfx950"\n.text\n'
    out += f".globl {KN}\n.p2align 8\n.type {KN},@function\n{KN}:\n"
    out += e.text()
    out += f""".section .rodata,"a"
.p2align 6
.amdhsa_kernel {KN}
  .amdhsa_next_free_vgpr 256
  .amdhsa_next_free_sgpr 102
  .amdhsa_accum_offset 256
  .amdhsa_group_segment_fixed_size 0
  .amdhsa_kernarg_size 96
  .amdhsa_user_sgpr_count 2
  .amdhsa_user_sgpr_kernarg_segment_ptr 1
  .amdhsa_system_sgpr_workgroup_id_x 1
  .amdhsa_float_denorm_mode_32 3
.end_amdhsa_kernel
"""
    return out


if __name__ == "__main__":
    ap = argparse.ArgumentParser()
    ap.add_argument("-o", default="k.s")
    ap.add_argument("--stamps", type=int, default=0)
    ap.add_argument("-P", default="")
    a = ap.parse_args()
    P = {k: int(v) for k, v in (x.split("=") for x in a.P.split(",") if x)}
    open(a.o, "w").write(gen(P, a.stamps))
```

```python
import struct, sys, argparse
from emit import Emitter

KN = "parallel_sum__mha_block_cached__swiglu_ffn__decode_kernel"
HEADER = open("parallel_sum__mha_block_cached__swiglu_ffn__decode.s.ref").read().split("; Override launch")[0]
LOG2E = 1.4426950408889634


def f32(x):
    return "0x%08x" % struct.unpack("<I", struct.pack("<f", x))[0]


def bitrev4(t):
    return int(f"{t:04b}"[::-1], 2)


XS = 0
QP = 10240
QF = QP + 8192
FP = QF + 256
ST = FP + 8192
WJ = ST + 32
TAGL = ST + 48
ZZ = ST + 64
HS = ZZ
FL = ZZ + 512
XCNT, HCNT, QFLAG, KCNT, HSF, WFLAG, QCNT, GCNT = FL, FL + 4, FL + 8, FL + 12, FL + 16, FL + 20, FL + 24, FL + 28
WTF = FL + 32
OP = ZZ + 2048
YP = OP + 2048
QS = YP
LDS_BYTES = YP + 20480
assert all(x % 16 == 0 for x in (QP, QF, FP, ST, WJ, ZZ, OP, YP))

WS_FP = 0
WS_ACC = 512 * 1024
WS_AFL = WS_ACC + 44 * 4096
WS_MBOX = WS_ACC + 48 * 4096
WS_EPOCH = WS_MBOX + 256 * 128
WS_DBG = 1 << 20
WS_Q = 2 << 20
ZWG = 252

POL = ["nt", "", "sc1", "sc0 sc1 nt", "sc0 nt", "sc1 nt", "sc0", "sc0 sc1"]
FIN = 4

sK, sV, sWQ, sWO, sX, sF, sWD, sOUT, sDBG, sWS, sPC = 40, 44, 48, 52, 56, 60, 64, 68, 72, 76, 80


def srd(n):
    return f"s[{n}:{n+3}]"


def vr(a, n=4):
    return f"v[{a}:{a+n-1}]"


def gen(P=None, stamps=0):
    P = dict(P or {})
    WS_Q = P.get("wsq", 2048) * 1024
    e = Emitter()
    E = e
    M = 2
    vA, vB = 6, 7
    A_z, A_o = 8, 11
    BB = 12
    T = 20
    W = P.get("W", 5)
    wfl = POL[P.get("wpol", 0)]
    lab = [0]

    def newlab(p):
        lab[0] += 1
        return f"L_{p}{lab[0]}"

    def stamp(i):
        if not stamps or (stamps == 2 and i in (8, 10)):
            return
        save = list(e.vm)
        E("s_memrealtime s[96:97]")
        E("s_waitcnt lgkmcnt(0)")
        E(f"v_mov_b32 v{vA}, s96")
        E(f"s_mov_b32 s99, {WS_DBG + i*4}")
        E(f"v_mov_b32 v{vB}, s98")
        E(f"buffer_store_dword v{vA}, v{vB}, {srd(sWS)}, s99 offen")
        e.vm = save

    def cstamp(k):
        if stamps == 2:
            E(f"s_memtime s[{20+2*k}:{21+2*k}]")

    def cflush(n):
        if stamps != 2:
            return
        E("s_waitcnt lgkmcnt(0)")
        for k in range(n):
            E(f"v_mov_b32 v{vA}, s{20+2*k}")
            E(f"s_mov_b32 s99, {WS_DBG + (10+k)*4}")
            E(f"v_mov_b32 v{vB}, s98")
            E(f"buffer_store_dword v{vA}, v{vB}, {srd(sWS)}, s99 offen")

    def reduce64(v, op, sdst, mid=None):
        for r in (8, 4, 2, 1):
            E(f"v_{op}_f32_dpp v{v}, v{v}, v{v} row_ror:{r} row_mask:0xf bank_mask:0xf")
        if mid:
            mid()
        E(f"v_{op}_f32_dpp v{v}, v{v}, v{v} row_bcast:15 row_mask:0xa bank_mask:0xf")
        E(f"v_{op}_f32_dpp v{v}, v{v}, v{v} row_bcast:31 row_mask:0xc bank_mask:0xf")
        E(f"v_readlane_b32 s{sdst}, v{v}, 63")

    def set_exec(lo, hi):
        if lo == hi == 0xffffffff:
            E("s_mov_b64 exec, -1")
        elif hi == 0 and lo <= 64:
            E(f"s_mov_b64 exec, {lo}")
        else:
            E(f"s_mov_b32 exec_lo, 0x{lo:08x}")
            E(f"s_mov_b32 exec_hi, 0x{hi:08x}")

    def full():
        set_exec(0xffffffff, 0xffffffff)

    def mk_srd(n, ptr, nbytes):
        E(f"s_mov_b64 s[{n}:{n+1}], s[{ptr}:{ptr+1}]")
        if nbytes is not None:
            E(f"s_mov_b32 s{n+2}, 0x{nbytes:x}")
        E(f"s_mov_b32 s{n+3}, 0x20000")

    def mkB(setidx, src, dpp=None):
        for r in range(4):
            if dpp is None:
                E(f"v_and_b32 v{BB+4*setidx+r}, v{src}, v{M+r}")
            else:
                E(f"v_and_b32_dpp v{BB+4*setidx+r}, v{src}, v{M+r} row_newbcast:{dpp} row_mask:0xf bank_mask:0xf")

    def lds_spin(off, target, tmp, reads=(), sleep=2):
        L, D = newlab("sp"), newlab("spd")
        E("s_mov_b32 s9, 0x400000")
        e.label(L)
        E(f"ds_read_b32 v{tmp}, v{A_z} offset:{off}")
        for r in reads:
            E(r)
        E("s_waitcnt lgkmcnt(0)")
        E(f"v_readfirstlane_b32 s10, v{tmp}")
        E(f"s_cmp_ge_u32 s10, {target}")
        E(f"s_cbranch_scc1 {D}")
        E("s_sub_u32 s9, s9, 1")
        E("s_cmp_eq_u32 s9, 0")
        E(f"s_cbranch_scc1 {D}")
        E(f"s_sleep {sleep}")
        E(f"s_branch {L}")
        e.label(D)

    def lds_arrive(off, tmp, sdst):
        E(f"v_mov_b32 v{tmp}, 1")
        set_exec(1, 0)
        E(f"ds_add_rtn_u32 v{tmp}, v{A_z}, v{tmp} offset:{off}")
        full()
        E("s_waitcnt lgkmcnt(0)")
        E(f"v_readfirstlane_b32 s{sdst}, v{tmp}")

    def masks(t):
        E(f"v_and_b32 v{t}, 1, v0")
        E(f"v_cmp_eq_u32 vcc, 1, v{t}")
        E(f"v_mov_b32 v{t+1}, 0xffff")
        E(f"v_mov_b32 v{t+2}, 0xffff0000")
        E(f"v_cndmask_b32 v{t}, v{t+1}, v{t+2}, vcc")
        E(f"v_bfe_u32 v{t+1}, v0, 1, 2")
        for r in range(4):
            E(f"v_cmp_eq_u32 vcc, {r}, v{t+1}")
            E(f"v_cndmask_b32 v{M+r}, 0, v{t}, vcc")

    def fin_addrs(F, x, y, nunits):
        for k in range(nunits):
            a_y, a_a, a_o, xv = F + 4 * k, F + 4 * k + 1, F + 4 * k + 2, F + 4 * k + 3
            E(f"s_add_u32 s9, s3, {4*k}")
            E("s_mul_i32 s10, s9, 60")
            E(f"v_bfe_u32 v{x}, v0, 4, 2")
            E(f"v_mul_u32_u24 v{y}, 15, v{x}")
            E(f"v_and_b32 v{a_a}, 15, v0")
            E(f"v_add3_u32 v{y}, v{y}, v{a_a}, s10")
            E(f"v_cmp_gt_u32 vcc, 15, v{a_a}")
            E(f"v_mov_b32 v{a_o}, 0x3ff")
            E(f"v_cndmask_b32 v{y}, v{a_o}, v{y}, vcc")
            E("s_lshl_b32 s9, s9, 2")
            E("s_add_u32 s9, s9, s5")
            E("s_lshl_b32 s9, s9, 12")
            E(f"s_add_u32 s9, s9, {WS_ACC}")
            E(f"v_lshlrev_b32 v{a_a}, 2, v{a_a}")
            E(f"v_lshl_add_u32 v{a_a}, v{x}, 7, v{a_a}")
            E(f"v_add_u32 v{a_a}, s9, v{a_a}")
            E("s_mul_i32 s9, s5, 1280")
            E(f"v_lshl_add_u32 v{a_o}, v{y}, 1, s9")
            E(f"v_cmp_gt_u32 vcc, 640, v{y}")
            E(f"v_mov_b32 v{x}, 0x7fff0000")
            E(f"v_cndmask_b32 v{a_o}, v{x}, v{a_o}, vcc")
            E(f"v_cndmask_b32 v{y}, 0, v{y}, vcc")
            E(f"s_mov_b64 s[{92+2*k}:{93+2*k}], vcc")
            E(f"v_lshrrev_b32 v{a_y}, 5, v{y}")
            E(f"v_lshlrev_b32 v{a_y}, 8, v{a_y}")
            E(f"v_and_b32 v{x}, 7, v{y}")
            E(f"v_lshl_add_u32 v{a_y}, v{x}, 4, v{a_y}")
            E(f"v_bfe_u32 v{x}, v{y}, 3, 2")
            E(f"v_lshl_add_u32 v{a_y}, v{x}, 2, v{a_y}")
            E(f"v_add_u32 v{a_y}, {YP}, v{a_y}")

    def x_loads(F, nunits):
        for k in range(nunits):
            E(f"buffer_load_ushort v{F+4*k+3}, v{F+4*k+2}, {srd(sX)}, 0 offen")

    def final_unit(F, k, R, epoch):
        a_y, a_a, a_o, xv = F + 4 * k, F + 4 * k + 1, F + 4 * k + 2, F + 4 * k + 3
        for i in range(4):
            E(f"v_add_f32 v{R+i}, v{R+i}, v{R+4+i}")
        E(f"v_add_f32 v{R}, v{R}, v{R+1}")
        E(f"v_add_f32 v{R+2}, v{R+2}, v{R+3}")
        E(f"v_add_f32 v{R}, v{R}, v{R+2}")
        E(f"v_cndmask_b32 v{R}, 1.0, v{R}, s[{92+2*k}:{93+2*k}]")
        E(f"v_mov_b32 v{R+1}, v{R}")
        E(f"buffer_atomic_add_f32 v{R+1}, v{a_a}, {srd(sWS)}, 0 offen sc0", tag=f"fin{k}")
        E(f"v_lshlrev_b32 v{xv}, 16, v{xv}")
        E(f"v_add_f32 v{R}, v{R}, v{xv}")

    def final_reads(F, k, R):
        a_y = F + 4 * k
        E(f"v_add_u32 v{R+8}, 128, v{a_y}")
        for hl in range(2):
            for i in range(2):
                E(f"ds_read2st64_b32 {vr(R+4*hl+2*i,2)}, v{a_y if hl == 0 else R+8} offset0:{40*i} offset1:{40*i+20}")

    def final_store(F, k, R, epoch):
        a_o = F + 4 * k + 2
        L = newlab("nf")
        e.wait(f"fin{k}")
        E(f"v_mov_b32_dpp v{R+2}, v{R+1} row_newbcast:15 row_mask:0xf bank_mask:0xf")
        E(f"v_add_f32 v{R}, v{R}, v{R+1}")
        E(f"v_cmp_eq_f32 vcc, {f32(63.0)}, v{R+2}")
        E(f"v_cvt_pk_bf16_f32 v{R}, v{R}, v{R}")
        E("s_and_saveexec_b64 s[12:13], vcc")
        E(f"s_cbranch_execz {L}")
        save = list(e.vm)
        E(f"buffer_store_short v{R}, v{a_o}, {srd(sOUT)}, 0 offen")
        if epoch:
            E("s_or_b32 s9, s5, s3")
            E("s_cmp_eq_u32 s9, 0")
            E(f"s_cbranch_scc0 {L}")
            E("s_and_b64 exec, exec, 1")
            E(f"s_cbranch_execz {L}")
            E(f"v_mov_b32 v{R+3}, s90")
            E(f"s_mov_b32 s8, {WS_EPOCH}")
            E(f"buffer_store_dword v{R+3}, v{A_z}, {srd(sWS)}, s8 offen")
        e.label(L)
        e.vm = save
        full()

    E("s_cmp_ge_u32 s2, 256")
    E("s_cbranch_scc1 L_end")
    E("s_load_dwordx16 s[16:31], s[0:1], 0")
    E("s_load_dwordx8 s[32:39], s[0:1], 64")
    E("v_lshrrev_b32 v1, 6, v0")
    E(f"v_mov_b32 v{A_z}, 0")
    E("v_readfirstlane_b32 s3, v1")
    E(f"v_and_b32 v{T}, 63, v0")
    E("s_and_b32 s4, s2, 31")
    E("s_lshr_b32 s5, s2, 6")
    E("s_bfe_u32 s6, s2, 0x10005")
    E("s_and_b32 s7, s4, 7")
    E("s_lshl_b32 s7, s7, 2")
    E("s_lshr_b32 s9, s4, 3")
    E("s_add_u32 s7, s7, s9")
    E(f"s_mov_b32 s91, {f32(LOG2E)}")
    if stamps:
        E("s_lshl_b32 s98, s2, 4")
        E("s_add_u32 s98, s98, s3")
        E("s_lshl_b32 s98, s98, 6")
    E("s_and_b32 s15, s3, 3")
    E("s_cmp_lt_u32 s3, 4")
    E("s_cbranch_scc1 L_helper")
    hist0 = list(e.hist)

    vKV = 1
    Q = 36
    DO = 40
    S0 = 44
    FS = 52
    vW = 60
    SETS = [64 + 4 * i for i in range(P.get("NS", 48))]
    kvp = P.get("kvp", 64) * 1024
    E("s_lshl_b32 s10, s5, 5")
    E("s_add_u32 s10, s10, s4")
    E("s_lshl_b32 s10, s10, 20")
    E(f"s_mul_i32 s11, s6, {kvp}")
    E("s_add_u32 s10, s10, s11")
    E("s_lshl_b32 s11, s15, 12")
    E("s_add_u32 s10, s10, s11")
    E(f"v_lshl_add_u32 v{vKV}, v{T}, 4, s10")
    E(f"s_mov_b32 s{sK+2}, 0x8000000")
    E(f"s_mov_b32 s{sK+3}, 0x20000")
    E("s_waitcnt lgkmcnt(0)")
    E(f"s_mov_b64 s[{sK}:{sK+1}], s[18:19]")
    free = list(SETS)
    where = {}

    def Wat(n):
        if "ws" in P:
            if n >= P.get("wsw", 999):
                return P.get("W2", 8)
            return int(str(P["ws"])[min(n, 255) // 32])
        return W if n < P.get("wsw", 230) else P.get("W2", 8)

    st = {"i": 0, "so": None}

    def issue():
        n = st["i"]
        if n >= 256 or not free:
            return False
        st["i"] += 1
        Wn = Wat(n)
        if n >= Wn:
            e.wait(f"kv{n-Wn}")
        free.sort()
        r = free.pop(0)
        where[n] = r
        t = n & 127
        so = (t >> 2) * 16384
        so += so // kvp * kvp
        if so and st["so"] != so:
            E(f"s_mov_b32 s8, {so}")
            st["so"] = so
        E(f"buffer_load_dwordx4 {vr(r)}, v{vKV}, {srd(sK if n < 128 else sV)}, {'s8' if so else '0'} offen offset:{(t&3)*1024} {POL[P.get('kpol', 0) if n < 128 else P.get('vpol', 0)]}", tag=f"kv{n}")
        return True

    for _ in range(Wat(0)):
        issue()
    mk_srd(sV, 20, 0x8000000)
    mk_srd(sWS, 38, 0x20000000)
    mk_srd(sOUT, 34, 5120)
    mk_srd(sX, 16, 5120)
    E("s_mov_b32 s86, 0xcccccccc")
    E("s_mov_b32 s87, 0xcccccccc")
    E("s_mov_b32 s88, 0xaaaaaaaa")
    E("s_mov_b32 s89, 0xaaaaaaaa")
    masks(T + 1)
    fin_addrs(FS, T + 1, T + 2, 2)
    E("s_cmp_eq_u32 s3, 7")
    E(f"s_cselect_b32 s9, 0x7fff0000, 0")
    E(f"v_or_b32 v{FS+5}, s9, v{FS+5}")
    E(f"v_and_b32 v{T+1}, 7, v0")
    E(f"v_bfe_u32 v{T+2}, v0, 4, 2")
    E(f"v_lshl_add_u32 v{T+1}, v{T+2}, 3, v{T+1}")
    E("s_lshl_b32 s9, s15, 9")
    E(f"v_lshl_add_u32 v{A_o}, v{T+1}, 4, s9")
    E(f"v_and_b32 v{T+8}, 15, v0")
    E(f"v_lshlrev_b32 v{T+8}, 4, v{T+8}")
    stamp(0)
    E("s_barrier")
    while issue():
        pass
    stamp(1)
    lds_spin(QFLAG, 1, T + 9, [f"ds_read_b128 {vr(Q)}, v{T+8} offset:{QF}"], sleep=1)
    stamp(2)

    def k_consume(n):
        r = where[n]
        a = T + (n & 1)
        e.wait(f"kv{n}")
        E(f"v_dot2_f32_bf16 v{a}, v{r}, v{Q}, 0")
        for i in range(1, 4):
            E(f"v_dot2_f32_bf16 v{a}, v{r+i}, v{Q+i}, v{a}")
        free.append(r)

    def k_post(n):
        if n & 1:
            b = T + 2 + ((n >> 1) & 1)
            E(f"v_add_f32_dpp v{b}, v{T}, v{T} row_shl:8 row_mask:0xf bank_mask:0x3")
            E(f"v_add_f32_dpp v{b}, v{T+1}, v{T+1} row_shr:8 row_mask:0xf bank_mask:0xc")
        if (n & 3) == 3:
            d = T + 4 + ((n >> 2) & 1)
            E(f"v_add_f32_dpp v{d}, v{T+2}, v{T+2} row_shl:4 row_mask:0xf bank_mask:0x5")
            E(f"v_add_f32_dpp v{d}, v{T+3}, v{T+3} row_shr:4 row_mask:0xf bank_mask:0xa")
            E(f"v_add_f32_dpp v{d}, v{d}, v{d} quad_perm:[2,3,0,1] row_mask:0xf bank_mask:0xf")
        if (n & 7) == 7:
            ee = T + 6 + ((n >> 3) & 1)
            E(f"v_cndmask_b32 v{ee}, v{T+4}, v{T+5}, s[86:87]")
            E(f"v_add_f32_dpp v{ee}, v{ee}, v{ee} quad_perm:[1,0,3,2] row_mask:0xf bank_mask:0xf")
        if (n & 15) == 15:
            E(f"v_cndmask_b32 v{S0 + (n >> 4)}, v{T+6}, v{T+7}, s[88:89]")

    catch = P.get("catch", 3)
    first = P.get("first", W)
    cnt = 0
    for n in range(128):
        k_consume(n)
        cnt += 1
        lag = st["i"] - (n + 1)
        if n < first or lag < Wat(st["i"]) or cnt >= catch:
            issue()
            cnt = 0
            if st["i"] - (n + 1) < Wat(st["i"]):
                issue()
        k_post(n)
    for i in range(0, 8, 2):
        E(f"v_cvt_pk_bf16_f32 v{T+i}, v{S0+i}, v{S0+i+1}")
    for i in range(0, 8, 2):
        E(f"v_lshlrev_b32 v{S0+i}, 16, v{T+i}")
        E(f"v_and_b32 v{S0+i+1}, 0xffff0000, v{T+i}")
    for i in range(8):
        E(f"v_mul_f32 v{S0+i}, {f32(128 ** -0.5)}, v{S0+i}")
    for i in range(0, 8, 2):
        E(f"v_cvt_pk_bf16_f32 v{T+i}, v{S0+i}, v{S0+i+1}")
    for i in range(0, 8, 2):
        E(f"v_lshlrev_b32 v{S0+i}, 16, v{T+i}")
        E(f"v_and_b32 v{S0+i+1}, 0xffff0000, v{T+i}")
    E(f"v_max3_f32 v{T}, v{S0}, v{S0+1}, v{S0+2}")
    E(f"v_max3_f32 v{T+1}, v{S0+3}, v{S0+4}, v{S0+5}")
    E(f"v_max3_f32 v{T}, v{T}, v{S0+6}, v{S0+7}")
    E(f"v_max_f32 v{T}, v{T}, v{T+1}")
    reduce64(T, "max", 12, mid=issue)
    for i in range(8):
        E(f"v_subrev_f32 v{S0+i}, s12, v{S0+i}")
    for i in range(8):
        E(f"v_mul_f32 v{S0+i}, s91, v{S0+i}")
    for i in range(8):
        E(f"v_exp_f32 v{S0+i}, v{S0+i}")
    E(f"v_add_f32 v{T}, v{S0}, v{S0+1}")
    E(f"v_add_f32 v{T+1}, v{S0+2}, v{S0+3}")
    E(f"v_add_f32 v{T+2}, v{S0+4}, v{S0+5}")
    E(f"v_add_f32 v{T+3}, v{S0+6}, v{S0+7}")
    E(f"v_add_f32 v{T}, v{T}, v{T+1}")
    E(f"v_add_f32 v{T+2}, v{T+2}, v{T+3}")
    for i in range(8):
        E(f"v_cvt_pk_bf16_f32 v{S0+i}, v{S0+i}, v{S0+i}")
    E(f"v_add_f32 v{T}, v{T}, v{T+2}")
    reduce64(T, "add", 13, mid=issue)
    E(f"v_mov_b32 v{T+2}, s12")
    E(f"v_mov_b32 v{T+3}, s13")
    E("s_lshl_b32 s9, s15, 3")
    E(f"v_mov_b32 v{T+5}, s9")
    E(f"v_mov_b32 v{T+6}, 1")
    set_exec(1, 0)
    E(f"ds_write_b64 v{T+5}, {vr(T+2,2)} offset:{ST}")
    E(f"ds_add_u32 v{A_z}, v{T+6} offset:{KCNT}")
    full()
    stamp(3)
    mkB(0, S0, dpp=bitrev4(0))
    for n in range(128, 256):
        t = n - 128
        if t + 1 < 128:
            mkB((t + 1) & 1, S0 + ((t + 1) >> 4), dpp=bitrev4((t + 1) & 15))
        e.wait(f"kv{n}")
        E(f"v_mfma_f32_16x16x32_bf16 {vr(DO)}, {vr(where[n])}, {vr(BB+4*(t&1))}, {vr(DO) if t else '0'}")
        free.append(where[n])
        for _ in range(2):
            if st["i"] - (n + 1) < Wat(st["i"]):
                issue()
        if t == 100:
            x_loads(FS, 2)
        if t == 112:
            E("s_lshl_b32 s9, s15, 2")
            E(f"v_mov_b32 v{T}, s9")
            lds_spin(WFLAG, 1, T + 1, [f"ds_read_b32 v{vW}, v{T} offset:{WJ}"], sleep=2)
    stamp(4)
    set_exec(0x00ff00ff, 0x00ff00ff)
    for r in range(4):
        E(f"v_mul_f32 v{T+r}, v{DO+r}, v{vW}")
    E(f"ds_write_b128 v{A_o}, {vr(T)} offset:{OP}")
    full()
    E("s_waitcnt lgkmcnt(0)")
    if P.get("solo") == 2:
        E("s_endpgm")
    E("s_barrier")
    stamp(8)
    e.vm = []
    E("s_barrier")
    final_reads(FS, 0, 64)
    final_reads(FS, 1, 76)
    stamp(10)
    E("s_waitcnt lgkmcnt(4)")
    final_unit(FS, 0, 64, False)
    E("s_waitcnt lgkmcnt(0)")
    final_unit(FS, 1, 76, False)
    final_store(FS, 0, 64, False)
    final_store(FS, 1, 76, False)
    stamp(7)
    E("s_endpgm")

    e.hist = hist0
    e.vm = []
    e.label("L_helper")
    DY = 36
    WD = 56
    WO = 96
    WQ, FA, DQ, DF = WO, WO + 20, WO + 40, WO + 48
    E(f"v_lshlrev_b32 v{T+6}, 3, v0")
    E(f"v_mov_b32 v{A_z+1}, 0")
    E(f"ds_write_b64 v{T+6}, {vr(A_z,2)} offset:{ZZ}")
    E(f"v_and_b32 v{T+1}, 15, v0")
    E(f"v_bfe_u32 v{T+2}, v0, 4, 2")
    E("s_mul_i32 s9, s15, 1280")
    E(f"v_lshl_add_u32 v{vA}, v{T}, 4, s9")
    E(f"v_lshl_add_u32 v{vB}, v{T}, 2, s9")
    E("s_lshr_b32 s11, s2, 5")
    E("s_mul_i32 s12, s11, 80")
    E("s_mul_i32 s13, s15, 20")
    E("s_add_u32 s12, s12, s13")
    E("s_lshl_b32 s10, s12, 13")
    E("s_lshl_b32 s13, s4, 8")
    E("s_add_u32 s10, s10, s13")
    E(f"v_mul_u32_u24 v{T+3}, {5*8192}, v{T+2}")
    E(f"v_lshl_add_u32 v{T+3}, v{T+1}, 4, v{T+3}")
    E(f"v_add_u32 v{T+3}, s10, v{T+3}")
    E("s_and_b32 s13, s11, 3")
    E("s_mul_i32 s13, s13, 160")
    E("s_mul_i32 s14, s15, 40")
    E("s_add_u32 s13, s13, s14")
    E("s_mul_i32 s14, s7, 108")
    E("s_mul_i32 s85, s13, 3456")
    E("s_add_u32 s14, s14, s85")
    E(f"v_lshrrev_b32 v{T+4}, 3, v{T}")
    E(f"v_mul_u32_u24 v{T+4}, 3456, v{T+4}")
    E(f"v_and_b32 v{T+5}, 7, v0")
    E(f"v_lshl_add_u32 v{T+4}, v{T+5}, 4, v{T+4}")
    E(f"v_add_u32 v{T+4}, s14, v{T+4}")
    E(f"v_cmp_eq_u32 vcc, 7, v{T+5}")
    E(f"v_mov_b32 v{T+7}, 0x7fff0000")
    E(f"v_cndmask_b32 v{T+4}, v{T+4}, v{T+7}, vcc")
    E("s_lshl_b32 s7, s7, 1")
    E("s_add_u32 s7, s7, s6")
    E(f"s_mov_b32 s{sF+2}, {0 if P.get('noffn') else 640*3456}")
    E(f"s_mov_b32 s{sF+3}, 0x20000")
    E(f"s_mov_b32 s{sX+2}, 5120")
    E(f"s_mov_b32 s{sX+3}, 0x20000")
    E(f"s_mov_b32 s{sWQ+2}, {0 if P.get('nowq') else 640*8192}")
    E(f"s_mov_b32 s{sWQ+3}, 0x20000")
    E("s_waitcnt lgkmcnt(0)")
    E(f"s_mov_b64 s[{sX}:{sX+1}], s[16:17]")
    E(f"buffer_load_dwordx4 {vr(BB)}, v{vA}, {srd(sX)}, 0 offen", tag="x")
    E(f"buffer_load_dword v{BB+4}, v{vB}, {srd(sX)}, 0 offen offset:1024", tag="x")
    E(f"s_load_dword s90, s[38:39], {WS_EPOCH}")
    E(f"s_mov_b64 s[{sWQ}:{sWQ+1}], s[22:23]")
    for t in range(5):
        if t:
            E(f"s_mov_b32 s8, {t*8192}")
        E(f"buffer_load_dwordx4 {vr(WQ+4*t)}, v{T+3}, {srd(sWQ)}, {'s8' if t else '0'} offen {wfl}", tag=f"wq{t}")
    E("s_cmp_ge_u32 s11, 4")
    E(f"s_cselect_b64 s[{sF}:{sF+1}], s[30:31], s[28:29]")
    for u in range(5):
        if u:
            E(f"s_mov_b32 s8, {u*8*3456}")
        E(f"buffer_load_dwordx4 {vr(FA+4*u)}, v{T+4}, {srd(sF)}, {'s8' if u else '0'} offen {wfl}", tag=f"f{u}")
    mk_srd(sWS, 38, 0x20000000)
    mk_srd(sOUT, 34, 5120)
    mk_srd(sWO, 24, 0 if P.get('nowo') else 4096 * 1280)
    mk_srd(sWD, 32, 0 if P.get('nowo') else 1728 * 1280)
    E("s_barrier")
    stamp(0)
    masks(T + 6)
    if P.get("solo"):
        E(f"v_mov_b32 v{T+9}, 1")
        E(f"ds_write_b32 v{A_z}, v{T+9} offset:{QFLAG}")
        E(f"ds_write_b32 v{A_z}, v{T+9} offset:{WFLAG}")
        E("s_waitcnt lgkmcnt(0)")
        E("s_branch L_nosvc2")
    X = WD
    t0, t1, t2, t3, t4 = WD + 10, WD + 11, WD + 12, WD + 13, WD + 14
    E(f"v_lshlrev_b32 v{t3}, 5, v{T}")
    E("s_mul_i32 s9, s15, 2560")
    E(f"v_add_u32 v{t3}, s9, v{t3}")
    E(f"v_lshlrev_b32 v{t4}, 3, v{T}")
    E(f"v_add_u32 v{t4}, s9, v{t4}")
    E(f"s_mov_b32 s10, {f32(640.0)}")
    E(f"s_mov_b32 s14, {f32(1.0/640.0)}")
    E(f"v_bfe_u32 v{vA}, v0, 3, 1")
    E(f"v_mul_u32_u24 v{vA}, 2560, v{vA}")
    E(f"v_mul_u32_u24 v{vB}, 20, v{T+2}")
    E("s_lshl_b32 s9, s12, 2")
    E(f"v_add3_u32 v{vA}, v{vA}, v{vB}, s9")
    E(f"v_lshrrev_b32 v{vB}, 3, v{T}")
    E("s_lshl_b32 s9, s13, 2")
    E(f"v_lshl_add_u32 v{vB}, v{vB}, 2, s9")
    vBf = T + 14
    E(f"v_mov_b32 v{vBf}, v{vB}")
    e.wait("x")
    for i in range(5):
        E(f"v_lshlrev_b32 v{X+2*i}, 16, v{BB+i}")
        E(f"v_and_b32 v{X+2*i+1}, 0xffff0000, v{BB+i}")
    E(f"v_add_f32 v{t0}, v{X}, v{X+1}")
    E(f"v_add_f32 v{t1}, v{X+2}, v{X+3}")
    for i in range(4, 10, 2):
        E(f"v_add_f32 v{t0}, v{t0}, v{X+i}")
        E(f"v_add_f32 v{t1}, v{t1}, v{X+i+1}")
    E(f"v_add_f32 v{t0}, v{t0}, v{t1}")
    reduce64(t0, "add", 9)

    def div640(dst, tmp):
        E(f"v_mov_b32 v{tmp}, s9")
        E(f"v_mul_f32 v{dst}, s14, v{tmp}")
        E(f"v_fma_f32 v{tmp}, -v{dst}, s10, v{tmp}")
        E(f"v_fma_f32 v{dst}, v{tmp}, s14, v{dst}")

    div640(t2, t1)
    E(f"v_sub_f32 v{BB}, v{X}, v{t2}")
    E(f"v_sub_f32 v{BB+1}, v{X+1}, v{t2}")
    E(f"v_mul_f32 v{t0}, v{BB}, v{BB}")
    E(f"v_mul_f32 v{t1}, v{BB+1}, v{BB+1}")
    for i in range(2, 10, 2):
        E(f"v_sub_f32 v{BB}, v{X+i}, v{t2}")
        E(f"v_sub_f32 v{BB+1}, v{X+i+1}, v{t2}")
        E(f"v_fmac_f32 v{t0}, v{BB}, v{BB}")
        E(f"v_fmac_f32 v{t1}, v{BB+1}, v{BB+1}")
    E(f"v_add_f32 v{t0}, v{t0}, v{t1}")
    reduce64(t0, "add", 9)
    div640(t0, t1)
    E(f"v_cvt_pk_bf16_f32 v{t1}, v{t2}, v{t0}")
    E(f"v_lshlrev_b32 v{t2}, 16, v{t1}")
    E(f"v_and_b32 v{t0}, 0xffff0000, v{t1}")
    E(f"v_add_f32 v{t0}, {f32(1e-5)}, v{t0}")
    E(f"v_cvt_pk_bf16_f32 v{t0}, v{t0}, v{t0}")
    E(f"v_and_b32 v{t0}, 0xffff0000, v{t0}")
    E(f"v_sqrt_f32 v{t0}, v{t0}")
    E(f"v_cvt_pk_bf16_f32 v{t0}, v{t0}, v{t0}")
    E(f"v_and_b32 v{t0}, 0xffff0000, v{t0}")
    E(f"v_rcp_f32 v{t0}, v{t0}")
    for i in range(0, 10, 2):
        E(f"v_sub_f32 v{X+i}, v{X+i}, v{t2}")
        E(f"v_sub_f32 v{X+i+1}, v{X+i+1}, v{t2}")
        E(f"v_cvt_pk_bf16_f32 v{t1}, v{X+i}, v{X+i+1}")
        E(f"v_lshlrev_b32 v{X+i}, 16, v{t1}")
        E(f"v_and_b32 v{X+i+1}, 0xffff0000, v{t1}")
        E(f"v_mul_f32 v{X+i}, v{X+i}, v{t0}")
        E(f"v_mul_f32 v{X+i+1}, v{X+i+1}, v{t0}")
        E(f"v_cvt_pk_bf16_f32 v{X+i}, v{X+i}, v{X+i}")
        E(f"v_cvt_pk_bf16_f32 v{X+i+1}, v{X+i+1}, v{X+i+1}")
    E(f"v_mov_b32 v{t1}, 1")
    E(f"ds_write_b128 v{t3}, {vr(X)} offset:{XS}")
    E(f"ds_write_b128 v{t3}, {vr(X+4)} offset:{XS+16}")
    E(f"ds_write_b64 v{t4}, {vr(X+8,2)} offset:{XS+2048}")
    set_exec(1, 0)
    E(f"ds_add_u32 v{A_z}, v{t1} offset:{XCNT}")
    full()
    QV, FV = WO + 64, WO + 76
    E(f"v_lshl_add_u32 v{T+11}, v{T+2}, 3, v{T+5}")
    E(f"v_lshlrev_b32 v{T+11}, 4, v{T+11}")
    E(f"v_bfe_u32 v{T+10}, v0, 3, 1")
    E(f"v_lshl_add_u32 v{T+11}, v{T+10}, 9, v{T+11}")
    E("s_lshl_b32 s85, s15, 11")
    E(f"v_add_u32 v{T+11}, s85, v{T+11}")
    E(f"v_lshlrev_b32 v{T+10}, 4, v{T}")
    E(f"v_lshlrev_b32 v{T+12}, 3, v0")
    rd = [f"ds_read_b32 v{QV+5*p+t}, v{vA} offset:{XS+p*5120+4*t}" for p in range(2) for t in range(5)]
    lds_spin(XCNT, 4, T + 9, rd, sleep=1)
    E("s_mul_i32 s90, s90, 1664525")
    E("s_add_u32 s90, s90, 1013904223")
    E("s_getreg_b32 s82, hwreg(HW_REG_XCC_ID, 0, 4)")
    if P.get("fakex"):
        E("s_bfe_u32 s82, s2, 0x30005")
    E("s_and_b32 s83, s90, -16")
    E("s_or_b32 s83, s83, s82")
    seq = [(t, p) for t in range(5) for p in range(2)]
    mkB(0, QV)
    for i, (t, p) in enumerate(seq):
        if i + 1 < len(seq):
            mkB((i + 1) & 1, QV + 5 * seq[i + 1][1] + seq[i + 1][0])
        if p == 0:
            e.wait(f"wq{t}")
        E(f"v_mfma_f32_16x16x32_bf16 {vr(DQ+4*p)}, {vr(WQ+4*t)}, {vr(BB+4*(i&1))}, {vr(DQ+4*p) if t else '0'}")
    for b in range(2):
        for u in range(5):
            E(f"ds_read_b32 v{FV+5*b+u}, v{vB} offset:{XS+b*2560+u*32}")
    E(f"v_mov_b32 v{T+9}, 1")
    for p in range(2):
        E(f"ds_write_b128 v{T+11}, {vr(DQ+4*p)} offset:{QP+p*1024}")
    set_exec(1, 0)
    E(f"ds_add_u32 v{A_z}, v{T+9} offset:{QCNT}")
    full()
    E("s_lshl_b32 s81, s4, 5")
    E("s_add_u32 s81, s81, s11")
    E("s_lshl_b32 s81, s81, 10")
    E(f"s_add_u32 s81, s81, {WS_Q}")
    E("s_lshl_b32 s8, s15, 13")
    E("s_add_u32 s8, s8, s81")
    E("s_waitcnt lgkmcnt(0)")
    R = QV

    def q_sum():
        E(f"v_add_f32 v{R}, v{R}, v{R+2}")
        E(f"v_add_f32 v{R+1}, v{R+1}, v{R+3}")
        E(f"v_add_f32 v{R+4}, v{R+4}, v{R+6}")
        E(f"v_add_f32 v{R+5}, v{R+5}, v{R+7}")
        E(f"v_add_f32 v{DQ}, v{R}, v{R+4}")
        E(f"v_add_f32 v{DQ+2}, v{R+1}, v{R+5}")
        E(f"v_mov_b32 v{DQ+1}, s83")
        E(f"v_mov_b32 v{DQ+3}, s83")

    lds_spin(QCNT, 4, T + 9, [f"ds_read_b64 {vr(R+2*k,2)}, v{T+12} offset:{QP+k*2048}" for k in range(4)], sleep=1)
    q_sum()
    E(f"buffer_store_dwordx4 {vr(DQ)}, v{T+10}, {srd(sWS)}, s8 offen", tag="qst")
    stamp(4)
    for b in range(2, 4):
        for u in range(5):
            E(f"ds_read_b32 v{FV+5*b+u}, v{vBf} offset:{XS+b*2560+u*32}")
    seq = [(u, b) for u in range(5) for b in range(4)]
    E("s_waitcnt lgkmcnt(0)")
    mkB(0, FV)
    for i, (u, b) in enumerate(seq):
        if i + 1 < len(seq):
            mkB((i + 1) & 1, FV + 5 * seq[i + 1][1] + seq[i + 1][0])
        if b == 0:
            e.wait(f"f{u}")
        E(f"v_mfma_f32_16x16x32_bf16 {vr(DF+4*b)}, {vr(FA+4*u)}, {vr(BB+4*(i&1))}, {vr(DF+4*b) if u else '0'}")
    E(f"v_bfe_u32 v{vB}, v0, 4, 1")
    E(f"v_lshl_add_u32 v{vA}, v{vB}, 3, v{T+5}")
    E(f"v_lshlrev_b32 v{vA}, 4, v{vA}")
    E(f"v_bfe_u32 v{vB}, v0, 5, 1")
    E(f"v_lshl_add_u32 v{vA}, v{vB}, 10, v{vA}")
    E(f"v_add_u32 v{vA}, s85, v{vA}")
    set_exec(0x00ff00ff, 0xff00ff00)
    for b in range(4):
        E(f"ds_write_b128 v{vA}, {vr(DF+4*b)} offset:{FP+b*256}")
    full()
    wothr = P.get("wothr", 2)
    E(f"v_lshlrev_b32 v{T+3}, 4, v{T+1}")
    E(f"v_mul_u32_u24 v{T+4}, {2*1280}, v{T+2}")
    E(f"v_add_u32 v{T+3}, v{T+3}, v{T+4}")
    E("s_mul_i32 s9, s7, 27")
    E("s_lshl_b32 s10, s15, 3")
    E("s_add_u32 s9, s9, s10")
    E("s_mul_i32 s9, s9, 1280")
    E(f"v_add_u32 v{T+4}, s9, v{T+3}")
    E(f"v_lshl_add_u32 v{T+8}, v{T+2}, 1, s10")
    E(f"v_cmp_lt_u32 vcc, 26, v{T+8}")
    E(f"v_mov_b32 v{T+9}, 0x7fff0000")
    E(f"v_cndmask_b32 v{T+4}, v{T+4}, v{T+9}, vcc")
    E("s_lshl_b32 s9, s4, 7")
    E("s_lshl_b32 s10, s15, 5")
    E("s_add_u32 s9, s9, s10")
    E("s_mul_i32 s9, s9, 1280")
    E(f"v_add_u32 v{T+3}, s9, v{T+3}")
    tags = []

    def paced(text, tag):
        if P.get("skipw"):
            return
        if wothr and len(tags) >= wothr:
            e.wait(tags[-wothr])
        E(text, tag=tag)
        tags.append(tag)

    wdl = [(k, cb) for k in range(2) for cb in range(5)]
    qdel = P.get("qdel", 4)

    def wd_load(k, cb):
        paced(f"buffer_load_dwordx4 {vr(WD+20*k+4*cb)}, v{T+4}, {srd(sWD)}, 0 offen offset:{k*1280+cb*256} {wfl}", f"wd{k}_{cb}")

    for k, cb in wdl[:qdel]:
        wd_load(k, cb)
    E("s_lshl_b32 s8, s4, 2")
    E("s_add_u32 s8, s8, s5")
    E("s_lshl_b32 s8, s8, 13")
    E("s_add_u32 s8, s8, s85")
    E(f"s_add_u32 s8, s8, {WS_Q}")
    G = WQ
    E("s_mov_b32 s9, 0x40000")
    E("s_mov_b32 s80, 0")
    e.label("L_qpoll")
    for k in range(2):
        E(f"buffer_load_dwordx4 {vr(G+4*k)}, v{T+10}, {srd(sWS)}, s8 offen offset:{k*1024} sc1")
    E("s_waitcnt vmcnt(0)")
    E(f"v_xor_b32 v{G+1}, s83, v{G+1}")
    E(f"v_xor_b32 v{G+3}, s83, v{G+3}")
    E(f"v_xor_b32 v{G+5}, s83, v{G+5}")
    E(f"v_xor_b32 v{G+7}, s83, v{G+7}")
    E(f"v_or3_b32 v{G+1}, v{G+1}, v{G+3}, v{G+5}")
    E(f"v_or_b32 v{G+1}, v{G+1}, v{G+7}")
    E(f"v_cmp_ne_u32 vcc, 0, v{G+1}")
    E("s_sub_u32 s9, s9, 1")
    E("s_nop 3")
    E("s_cbranch_vccz L_qok")
    E(f"v_cmp_lt_u32 s[86:87], 15, v{G+1}")
    E("s_cmp_eq_u32 s80, 1")
    E("s_cbranch_scc1 L_wtdone")
    E("s_nop 3")
    E("s_cmp_eq_u64 s[86:87], 0")
    E("s_cbranch_scc1 L_wt")
    E(f"s_cmp_gt_u32 s9, {0x40000 - P.get('wtn', 4)}")
    E("s_cbranch_scc1 L_wtdone")
    e.label("L_wt")
    E("s_mov_b32 s80, 1")
    E(f"v_mov_b32 v{T+9}, 1")
    E(f"ds_write_b32 v{A_z}, v{T+9} offset:{WTF}")
    E(f"v_lshlrev_b32 v{T+13}, 3, v{T}")
    for bb in range(4):
        for k in range(4):
            E(f"ds_read_b64 {vr(R+2*k,2)}, v{T+13} offset:{QP+k*2048+bb*512}")
        E(f"s_add_u32 s10, s81, {bb*8192}")
        E("s_waitcnt lgkmcnt(0)")
        q_sum()
        E(f"buffer_store_dwordx4 {vr(DQ)}, v{T+10}, {srd(sWS)}, s10 offen sc1")
        E("s_nop 1")
    e.label("L_wtdone")
    E("s_nop 4")
    E("s_cmp_eq_u64 s[86:87], 0")
    E("s_cbranch_scc1 L_qok")
    E("s_cmp_eq_u32 s9, 0")
    E("s_cbranch_scc1 L_qok")
    E("s_sleep %d" % P.get("qsleep", 4))
    E("s_branch L_qpoll")
    e.label("L_qok")
    e.vm = []
    E(f"v_add_f32 v{G}, v{G}, v{G+4}")
    E(f"v_add_f32 v{G+1}, v{G+2}, v{G+6}")
    E(f"ds_write_b64 v{T+12}, {vr(G,2)} offset:{QS}")
    lds_arrive(GCNT, T + 9, 9)
    E("s_cmp_eq_u32 s9, 3")
    E("s_cbranch_scc0 L_notq")
    E(f"v_lshlrev_b32 v{T+13}, 3, v{T}")
    for k in range(4):
        E(f"ds_read_b64 {vr(G+2*k,2)}, v{T+13} offset:{QS+k*512}")
    F = WO + 32
    E(f"v_lshlrev_b32 v{vA}, 5, v{T+2}")
    E(f"v_and_b32 v{vB}, 1, v0")
    E(f"v_lshl_add_u32 v{vA}, v{vB}, 4, v{vA}")
    E(f"v_bfe_u32 v{vB}, v0, 1, 3")
    E(f"v_add_lshl_u32 v{vA}, v{vA}, v{vB}, 1")
    E(f"v_mov_b32 v{T+9}, 1")
    E("s_waitcnt lgkmcnt(0)")
    E(f"v_add_f32 v{G}, v{G}, v{G+2}")
    E(f"v_add_f32 v{G+1}, v{G+1}, v{G+3}")
    E(f"v_add_f32 v{G+4}, v{G+4}, v{G+6}")
    E(f"v_add_f32 v{G+5}, v{G+5}, v{G+7}")
    E(f"v_add_f32 v{G}, v{G}, v{G+4}")
    E(f"v_add_f32 v{G+1}, v{G+1}, v{G+5}")
    E(f"v_cvt_pk_bf16_f32 v{G}, v{G}, v{G+1}")
    E(f"ds_write_b16 v{vA}, v{G} offset:{QF}")
    E(f"ds_write_b16_d16_hi v{vA}, v{G} offset:{QF+16}")
    E(f"ds_write_b32 v{A_z}, v{T+9} offset:{QFLAG}")
    E(f"ds_read_b32 v{T+13}, v{A_z} offset:{WTF}")
    E(f"v_bfe_u32 v{vA}, v0, 4, 2")
    E(f"v_lshlrev_b32 v{vA}, 7, v{vA}")
    E(f"v_and_b32 v{vB}, 3, v0")
    E(f"v_lshl_add_u32 v{vA}, v{vB}, 5, v{vA}")
    E(f"v_bfe_u32 v{vB}, v0, 2, 2")
    E(f"v_lshl_add_u32 v{vA}, v{vB}, 2, v{vA}")
    E(f"v_add_u32 v{vA}, {FP}, v{vA}")
    E(f"v_add_u32 v{vB}, 16, v{vA}")
    for c_ in range(2):
        for k in range(8):
            E(f"ds_read2st64_b32 {vr(F+16*c_+2*k,2)}, v{vA if c_ == 0 else vB} offset0:{4*k} offset1:{4*k+2}")
        E("s_waitcnt lgkmcnt(0)")
    for c_ in range(2):
        n_ = 16
        while n_ > 2:
            n_ //= 2
            for r in range(n_):
                E(f"v_add_f32 v{F+16*c_+r}, v{F+16*c_+r}, v{F+16*c_+r+n_}")
    for k in range(2):
        E(f"v_mov_b32 v{F+4+4*k}, v{F+k}")
        E(f"v_mov_b32 v{F+5+4*k}, s90")
        E(f"v_mov_b32 v{F+6+4*k}, v{F+16+k}")
        E(f"v_mov_b32 v{F+7+4*k}, s90")
    E("s_lshl_b32 s8, s4, 3")
    E("s_add_u32 s8, s8, s11")
    E("s_lshl_b32 s8, s8, 11")
    E(f"v_readfirstlane_b32 s10, v{T+13}")
    E("s_cmp_eq_u32 s10, 0")
    E("s_cbranch_scc1 L_fpl")
    E(f"buffer_store_dwordx4 {vr(F+4)}, v{T+10}, {srd(sWS)}, s8 offen sc1")
    E(f"buffer_store_dwordx4 {vr(F+8)}, v{T+10}, {srd(sWS)}, s8 offen offset:1024 sc1")
    E("s_branch L_nofpub")
    e.label("L_fpl")
    E(f"buffer_store_dwordx4 {vr(F+4)}, v{T+10}, {srd(sWS)}, s8 offen")
    E(f"buffer_store_dwordx4 {vr(F+8)}, v{T+10}, {srd(sWS)}, s8 offen offset:1024")
    e.label("L_nofpub")
    E(f"s_cmp_ge_u32 s2, {ZWG}")
    E("s_cbranch_scc0 L_notq")
    for r in range(4):
        E(f"v_mov_b32 v{F+r}, 0")
    E(f"s_sub_u32 s9, s2, {ZWG}")
    E("s_lshl_b32 s8, s9, 12")
    E(f"s_add_u32 s8, s8, {WS_ACC}")
    set_exec(0xffffffff, 0)
    for k in range(11):
        E(f"buffer_store_dwordx4 {vr(F)}, v{T+10}, {srd(sWS)}, s8 offen sc1")
        E("s_add_u32 s8, s8, 16384")
    E(f"v_mov_b32 v{F+12}, s90")
    E("s_lshl_b32 s8, s9, 7")
    E(f"s_add_u32 s8, s8, {WS_AFL}")
    E("s_waitcnt vmcnt(0)")
    set_exec(1, 0)
    E(f"buffer_store_dword v{F+12}, v{A_z}, {srd(sWS)}, s8 offen sc1")
    full()
    e.label("L_notq")
    E("s_nop 1")
    e.vm = []
    stamp(1)
    for k, cb in wdl[qdel:]:
        wd_load(k, cb)
    for t in range(8):
        so = ((t & 3) * 8 + (t >> 2)) * 1280
        if so:
            E(f"s_mov_b32 s8, {so}")
        for cb in range(5):
            paced(f"buffer_load_dwordx4 {vr(WO+20*t+4*cb)}, v{T+3}, {srd(sWO)}, {'s8' if so else '0'} offen offset:{cb*256} {wfl}", f"wo{t}_{cb}")
    stamp(2)
    E(f"v_bfe_u32 v{T+9}, v0, 3, 1")
    E(f"v_lshlrev_b32 v{T+9}, 8, v{T+9}")
    E(f"v_lshl_add_u32 v{T+8}, v{T+8}, 2, v{T+9}")
    E("s_cmp_eq_u32 s15, 0")
    E("s_cbranch_scc0 L_nosvc1")
    save = list(e.vm)
    a0, a1, hh = T + 9, T + 10, DY
    E("s_mul_i32 s12, s6, 27")
    E("s_and_b32 s9, s12, -2")
    E(f"v_min_u32 v{a0}, 13, v{T+1}")
    E(f"v_lshl_add_u32 v{a0}, v{a0}, 1, s9")
    E(f"v_lshlrev_b32 v{a1}, 3, v{a0}")
    E(f"v_lshl_add_u32 v{a1}, v{T+2}, 11, v{a1}")
    E("s_lshl_b32 s8, s5, 9")
    E("s_lshl_b32 s13, s4, 14")
    E("s_add_u32 s8, s8, s13")
    E(f"s_add_u32 s13, s8, 8192")
    E("s_lshl_b32 s14, s5, 7")
    E(f"s_add_u32 s14, s14, {WS_AFL}")
    E("s_load_dword s10, s[38:39], s14")
    E("s_mov_b32 s9, 0x40000")
    E(f"v_mov_b32 v{hh+8}, s90")
    E("s_waitcnt lgkmcnt(0)")
    E("s_cmp_eq_u32 s10, s90")
    E("s_cselect_b32 s11, 1, 0")
    e.label("L_poll")
    E(f"buffer_load_dwordx4 {vr(hh)}, v{a1}, {srd(sWS)}, s8 offen sc1")
    E(f"buffer_load_dwordx4 {vr(hh+4)}, v{a1}, {srd(sWS)}, s13 offen sc1")
    E("s_cmp_eq_u32 s11, 1")
    E("s_cbranch_scc1 L_nofl")
    E(f"buffer_load_dword v{hh+8}, v{A_z}, {srd(sWS)}, s14 offen sc1")
    e.label("L_nofl")
    E("s_waitcnt vmcnt(0)")
    E(f"v_xor_b32 v{hh+9}, s90, v{hh+8}")
    for k in range(4):
        E(f"v_xor_b32 v{hh+2*k+1}, s90, v{hh+2*k+1}")
    E(f"v_or3_b32 v{hh+9}, v{hh+9}, v{hh+1}, v{hh+3}")
    E(f"v_or3_b32 v{hh+9}, v{hh+9}, v{hh+5}, v{hh+7}")
    E(f"v_cmp_ne_u32 vcc, 0, v{hh+9}")
    E("s_sub_u32 s9, s9, 1")
    E("s_nop 3")
    E("s_cbranch_vccz L_polldone")
    E("s_cmp_eq_u32 s9, 0")
    E("s_cbranch_scc1 L_polldone")
    E("s_sleep 32")
    E("s_branch L_poll")
    e.label("L_polldone")
    for op in ("v_permlane32_swap_b32", "v_permlane16_swap_b32"):
        for k in range(4):
            E(f"v_mov_b32 v{hh+2*k+1}, v{hh+2*k}")
        for k in range(4):
            E(f"{op} v{hh+2*k}, v{hh+2*k+1}")
        for k in range(4):
            E(f"v_add_f32 v{hh+2*k}, v{hh+2*k}, v{hh+2*k+1}")
    E("s_mov_b32 s10, 0xffff0000")
    E("s_mov_b32 s11, 0xffff0000")
    E(f"v_cndmask_b32 v{hh}, v{hh}, v{hh+2}, s[10:11]")
    E(f"v_cndmask_b32 v{hh+4}, v{hh+4}, v{hh+6}, s[10:11]")
    E(f"v_and_b32 v{a1}, 1, v{T+2}")
    E(f"v_add_u32 v{a0}, v{a0}, v{a1}")
    E(f"v_subrev_u32 v{a0}, s12, v{a0}")
    E(f"v_cvt_pk_bf16_f32 v{hh+1}, v{hh}, v{hh+4}")
    E(f"v_lshlrev_b32 v{hh}, 16, v{hh+1}")
    E(f"v_and_b32 v{hh+4}, 0xffff0000, v{hh+1}")
    E(f"v_mul_f32 v{hh+2}, {f32(-LOG2E)}, v{hh}")
    E(f"v_exp_f32 v{hh+2}, v{hh+2}")
    E(f"v_cmp_gt_u32 vcc, 27, v{a0}")
    E(f"v_add_f32 v{hh+2}, 1.0, v{hh+2}")
    E(f"v_rcp_f32 v{hh+2}, v{hh+2}")
    E(f"v_lshlrev_b32 v{a0}, 2, v{a0}")
    E(f"v_mul_f32 v{hh}, v{hh}, v{hh+2}")
    E(f"v_cvt_pk_bf16_f32 v{hh}, v{hh}, v{hh}")
    E(f"v_and_b32 v{hh}, 0xffff0000, v{hh}")
    E(f"v_mul_f32 v{hh}, v{hh}, v{hh+4}")
    E(f"v_cvt_pk_bf16_f32 v{hh}, v{hh}, v{hh}")
    E(f"v_mov_b32 v{hh+1}, 1")
    E("s_mov_b64 exec, vcc")
    E(f"ds_write_b32 v{a0}, v{hh} offset:{HS}")
    E(f"ds_write_b32 v{A_z}, v{hh+1} offset:{HSF}")
    full()
    e.label("L_nosvc1")
    e.vm = save
    lds_spin(HSF, 1, T + 9, [f"ds_read_b64 {vr(T+10,2)}, v{T+8} offset:{HS}"], sleep=16)
    e.wait("wd1_4")
    for k in range(2):
        mkB(k, T + 10 + k)
    for k in range(2):
        for cb in range(5):
            E(f"v_mfma_f32_16x16x32_bf16 {vr(DY+4*cb)}, {vr(WD+20*k+4*cb)}, {vr(BB+4*k)}, {vr(DY+4*cb) if k else '0'}")
    stamp(3)
    E("s_cmp_eq_u32 s15, 0")
    E("s_cbranch_scc0 L_nosvc2")
    save = list(e.vm)
    mW, lW, FJ = T + 14, T + 15, T + 13
    E(f"v_and_b32 v{T+9}, 3, v0")
    E(f"v_lshlrev_b32 v{T+8}, 3, v{T+9}")
    E(f"v_lshlrev_b32 v{T+9}, 2, v{T+9}")
    lds_spin(KCNT, 4, T + 12, [f"ds_read_b64 {vr(T+10,2)}, v{T+8} offset:{ST}", f"ds_read_b32 v{WD+9}, v{A_z} offset:{WTF}"], sleep=16)
    E(f"v_max_f32_dpp v{mW}, v{T+10}, v{T+10} quad_perm:[1,0,3,2] row_mask:0xf bank_mask:0xf")
    E(f"v_max_f32_dpp v{mW}, v{mW}, v{mW} quad_perm:[2,3,0,1] row_mask:0xf bank_mask:0xf")
    E(f"v_sub_f32 v{FJ}, v{T+10}, v{mW}")
    E(f"v_mul_f32 v{FJ}, s91, v{FJ}")
    E(f"v_exp_f32 v{FJ}, v{FJ}")
    E(f"v_mul_f32 v{lW}, v{FJ}, v{T+11}")
    E(f"v_add_f32_dpp v{lW}, v{lW}, v{lW} quad_perm:[1,0,3,2] row_mask:0xf bank_mask:0xf")
    E(f"v_add_f32_dpp v{lW}, v{lW}, v{lW} quad_perm:[2,3,0,1] row_mask:0xf bank_mask:0xf")
    MB = WD
    E(f"v_mov_b32 v{MB}, v{mW}")
    E(f"v_mov_b32 v{MB+1}, s90")
    E(f"v_mov_b32 v{MB+2}, v{lW}")
    E(f"v_mov_b32 v{MB+3}, s90")
    E("s_lshl_b32 s9, s2, 7")
    E(f"s_add_u32 s8, s9, {WS_MBOX}")
    E(f"v_lshlrev_b32 v{MB+8}, 4, v{T}")
    E(f"v_readfirstlane_b32 s10, v{MB+9}")
    set_exec(15, 0)
    E("s_cmp_eq_u32 s10, 0")
    E("s_cbranch_scc1 L_mbl")
    E(f"buffer_store_dwordx4 {vr(MB)}, v{MB+8}, {srd(sWS)}, s8 offen sc1")
    E("s_branch L_mbs")
    e.label("L_mbl")
    E(f"buffer_store_dwordx4 {vr(MB)}, v{MB+8}, {srd(sWS)}, s8 offen")
    e.label("L_mbs")
    full()
    E(f"s_xor_b32 s8, s8, {32*128}")
    E("s_mov_b32 s9, 0x40000")
    if P.get("mbs", 1):
        for _ in range(P.get("mbwait", 1)):
            E("s_sleep 127")
        E("s_load_dwordx4 s[84:87], s[38:39], s8")
        E("s_waitcnt lgkmcnt(0)")
        E(f"v_mov_b32 v{MB+4}, s84")
        E(f"v_mov_b32 v{MB+6}, s86")
        E("s_cmp_eq_u32 s85, s90")
        E("s_cbranch_scc0 L_mb")
        E("s_cmp_eq_u32 s87, s90")
        E("s_cbranch_scc1 L_mbdone")
    e.label("L_mb")
    E("s_sleep %d" % P.get("mbsleep", 64))
    E(f"buffer_load_dwordx4 {vr(MB+4)}, v{A_z}, {srd(sWS)}, s8 offen sc1")
    E("s_waitcnt vmcnt(0)")
    E(f"v_readfirstlane_b32 s10, v{MB+5}")
    E(f"v_readfirstlane_b32 s14, v{MB+7}")
    E("s_sub_u32 s9, s9, 1")
    E("s_cmp_eq_u32 s9, 0")
    E("s_cbranch_scc1 L_mbdone")
    E("s_cmp_eq_u32 s10, s90")
    E("s_cbranch_scc0 L_mb")
    E("s_cmp_eq_u32 s14, s90")
    E("s_cbranch_scc0 L_mb")
    e.label("L_mbdone")
    m2, l2 = MB + 4, MB + 6
    E(f"v_max_f32 v{T+6}, v{mW}, v{m2}")
    E(f"v_sub_f32 v{T+7}, v{mW}, v{T+6}")
    E(f"v_sub_f32 v{T+8}, v{m2}, v{T+6}")
    E(f"v_mul_f32 v{T+7}, s91, v{T+7}")
    E(f"v_mul_f32 v{T+8}, s91, v{T+8}")
    E(f"v_exp_f32 v{T+7}, v{T+7}")
    E(f"v_exp_f32 v{T+8}, v{T+8}")
    E(f"v_mul_f32 v{T+6}, v{lW}, v{T+7}")
    E(f"v_fmac_f32 v{T+6}, v{l2}, v{T+8}")
    E(f"v_rcp_f32 v{T+6}, v{T+6}")
    E(f"v_mul_f32 v{T+7}, v{T+7}, v{FJ}")
    E(f"v_mul_f32 v{T+6}, v{T+6}, v{T+7}")
    E(f"v_mov_b32 v{T+7}, 1")
    E(f"ds_write_b32 v{T+9}, v{T+6} offset:{WJ}")
    E(f"ds_write_b32 v{A_z}, v{T+7} offset:{WFLAG}")
    e.label("L_nosvc2")
    e.vm = save
    FH = WD + 32
    fin_addrs(FH, T + 6, T + 7, 1)
    x_loads(FH, 1)
    E("s_lshl_b32 s9, s15, 7")
    E(f"v_lshl_add_u32 v{A_o}, v{T+2}, 5, s9")
    mL = T + 11
    E(f"v_cmp_lt_u32 vcc, 7, v{T+1}")
    E(f"v_mov_b32 v{T+9}, 0xffff0000")
    E(f"v_cndmask_b32 v{mL}, 0, v{T+9}, vcc")
    SEL = T + 12
    E(f"v_mov_b32 v{T+9}, 0x03020302")
    E(f"v_mov_b32 v{T+10}, 0x0c0c0c0c")
    for r in range(4):
        E(f"v_bfi_b32 v{SEL+r}, v{M+r}, v{T+9}, v{T+10}")
    E("s_mul_i32 s9, s15, 5120")
    E(f"v_lshl_add_u32 v{T+8}, v{T}, 4, s9")
    stamp(9)
    if P.get("solo") == 2:
        E("s_endpgm")
    cstamp(5)
    E("s_waitcnt vmcnt(0) lgkmcnt(0)")
    E("s_barrier")
    cstamp(0)
    OB = [BB, BB + 4, T, T + 4]
    BS = WD
    OC = [BS + 16 + 4 * s_ for s_ in range(4)]
    for s_ in range(4):
        E(f"ds_read_b128 {vr(OB[s_])}, v{A_o} offset:{OP+s_*512}")
    for s_ in range(4):
        E(f"ds_read_b128 {vr(OC[s_])}, v{A_o} offset:{OP+s_*512+16}")
    stamp(8)

    def sum_ops(src, dst, r):
        return [f"v_pk_add_f32 {vr(src[0]+r,2)}, {vr(src[0]+r,2)}, {vr(src[1]+r,2)}",
                f"v_pk_add_f32 {vr(src[2]+r,2)}, {vr(src[2]+r,2)}, {vr(src[3]+r,2)}",
                f"v_pk_add_f32 {vr(dst+r,2)}, {vr(src[0]+r,2)}, {vr(src[2]+r,2)}"]

    def prep_ops(t):
        o = BB + t
        ops = [f"v_and_b32 v{T+9+(t&1)}, v{o}, v{mL}", f"v_sub_f32 v{o}, v{o}, v{T+9+(t&1)}"]
        ops += [f"v_perm_b32 v{BS+4*t+r}, v{o}, v{o}, v{SEL+r}" for r in range(4)]
        return ops

    E("s_waitcnt lgkmcnt(%d)" % (0 if stamps == 2 else 4))
    cstamp(1)
    for op in sum_ops(OB, BB, 0) + prep_ops(0):
        E(op)
    pend = prep_ops(1) + sum_ops(OB, BB, 2) + prep_ops(2) + ["s_waitcnt lgkmcnt(0)"] + sum_ops(OC, BB + 4, 0) + sum_ops(OC, BB + 4, 2)
    pend += [op for t in range(3, 8) for op in prep_ops(t)]
    last_needed = {}
    for i_, op in enumerate(pend):
        if op.startswith("v_perm"):
            last_needed[(int(op.split()[1][1:-1]) - BS) // 4] = i_ + 1
    nt = P.get("nt", 5)
    order = [(t, cb) for t in range(nt) for cb in range(5)] + [(t, cb) for cb in range(5) for t in range(nt, 8)]
    done = 0
    wr = []
    for i, (t, cb) in enumerate(order):
        while done < last_needed.get(t, 0):
            E(pend.pop(0)); done += 1
        E(f"v_mfma_f32_16x16x32_bf16 {vr(DY+4*cb)}, {vr(WO+20*t+4*cb)}, {vr(BS+4*t)}, {vr(DY+4*cb)}")
        for _ in range(P.get("ppm", 2)):
            if pend:
                E(pend.pop(0)); done += 1
        if t == 7:
            wr.append((i, cb))
        if wr and i - wr[0][0] >= 8:
            E(f"ds_write_b128 v{T+8}, {vr(DY+4*wr[0][1])} offset:{YP+wr[0][1]*1024}")
            wr.pop(0)
    cstamp(2)
    for _, cb in wr:
        E(f"ds_write_b128 v{T+8}, {vr(DY+4*cb)} offset:{YP+cb*1024}")
    E("s_waitcnt lgkmcnt(0)")
    e.vm = []
    E("s_barrier")
    cstamp(3)
    final_reads(FH, 0, WO)
    E("s_waitcnt lgkmcnt(0)")
    final_unit(FH, 0, WO, True)
    final_store(FH, 0, WO, True)
    cstamp(4)
    stamp(7)
    cflush(6)
    e.label("L_end")
    E("s_endpgm")
    e.label("L_codeend")

    out = HEADER
    out += f"; @launch grid=(256,1,1) block=(512,1,1) lds={LDS_BYTES}\n"
    out += '.amdgcn_target "amdgcn-amd-amdhsa--gfx950"\n.text\n'
    out += f".globl {KN}\n.p2align 8\n.type {KN},@function\n{KN}:\n"
    out += e.text()
    out += f""".section .rodata,"a"
.p2align 6
.amdhsa_kernel {KN}
  .amdhsa_next_free_vgpr 256
  .amdhsa_next_free_sgpr 102
  .amdhsa_accum_offset 256
  .amdhsa_group_segment_fixed_size 0
  .amdhsa_kernarg_size 96
  .amdhsa_user_sgpr_count 2
  .amdhsa_user_sgpr_kernarg_segment_ptr 1
  .amdhsa_system_sgpr_workgroup_id_x 1
  .amdhsa_float_denorm_mode_32 3
.end_amdhsa_kernel
"""
    return out


if __name__ == "__main__":
    ap = argparse.ArgumentParser()
    ap.add_argument("-o", default="k.s")
    ap.add_argument("--stamps", type=int, default=0)
    ap.add_argument("-P", default="")
    a = ap.parse_args()
    P = {k: int(v) for k, v in (x.split("=") for x in a.P.split(",") if x)}
    open(a.o, "w").write(gen(P, a.stamps))
```
